```python
import torch

def _softmax(x, axis=-1):
    return torch.softmax(x, dim=axis)
def _gelu(x):
    return torch.nn.functional.gelu(x, approximate="tanh")
def _silu(x):
    return torch.nn.functional.silu(x)
def _sigmoid(x):
    return torch.sigmoid(x)
def _layernorm(x, axis=-1, eps=1e-5):
    m = x.mean(dim=axis, keepdim=True)
    v = x.var(dim=axis, keepdim=True, unbiased=False)
    return (x - m) / torch.sqrt(v + eps)
def _scatter_add(tgt, idx, src, axis=0):
    return tgt.clone().index_add_(axis, idx, src)
def _segment_sum(src, seg, n):
    out = torch.zeros((n,) + src.shape[1:], dtype=src.dtype)
    return out.index_add_(0, seg, src)
def _pad(x, pw):
    flat = tuple(v for pair in reversed(pw) for v in pair)
    return torch.nn.functional.pad(x, flat)

kernel_name = 'parallel_sum__linear_kernel_hedgehog__swiglu_ffn__prompt'

def setup_inputs():

    _w = (lambda a: (lambda t: t.to(torch.bfloat16) if t.is_floating_point() else t)(torch.as_tensor(a)))
    def _A_setup():
        B, S, D, H = 1, 2048, 640, 32
        Dh = D // H
        return {
            "x": _w((lambda *s: torch.randn(*s, dtype=torch.bfloat16) * 0.05)(B, S, D)),
            "wqkv": _w((lambda *s: torch.randn(*s, dtype=torch.bfloat16) * 0.4)(D, 3 * D)),
            "w_phi": _w((lambda *s: torch.randn(*s, dtype=torch.bfloat16) * 0.4)(H, Dh, Dh) * (Dh ** -0.5)),
            "wo": _w((lambda *s: torch.randn(*s, dtype=torch.bfloat16) * 0.1)(D, D)),
        }
    _A_in = _A_setup()

    def _B_setup():
        B, S, D, F = 1, 2048, 640, 1536
        return {
            "x": _w((lambda *s: torch.randn(*s, dtype=torch.bfloat16) * 0.05)(B, S, D)),
            "w_gate": _w((lambda *s: torch.randn(*s, dtype=torch.bfloat16) * 0.05)(D, F)),
            "w_up": _w((lambda *s: torch.randn(*s, dtype=torch.bfloat16) * 0.05)(D, F)),
            "w_down": _w((lambda *s: torch.randn(*s, dtype=torch.bfloat16) * 0.05)(F, D)),
        }
    _B_in = _B_setup()

    return {
        "A_x": _A_in["x"],
        "A_wqkv": _A_in["wqkv"],
        "A_w_phi": _A_in["w_phi"],
        "A_wo": _A_in["wo"],
        "B_x": _B_in["x"],
        "B_w_gate": _B_in["w_gate"],
        "B_w_up": _B_in["w_up"],
        "B_w_down": _B_in["w_down"],
    }

def reference(A_x, A_wqkv, A_w_phi, A_wo, B_x, B_w_gate, B_w_up, B_w_down):
    def _A_ref(x, wqkv, w_phi, wo):
        B, S, D = x.shape
        H = 32; Dh = D // H
        qkv = (lambda x, *d: x.permute(*d))((x @ wqkv).reshape(B, S, 3, H, Dh), 2, 0, 3, 1, 4)
        q, k, v = qkv[0], qkv[1], qkv[2]
        pq = torch.einsum("bhsd,hdf->bhsf", q, w_phi)
        pk = torch.einsum("bhsd,hdf->bhsf", k, w_phi)
        phi_q = torch.concatenate([_softmax(pq, axis=-1), _softmax(-pq, axis=-1)], axis=-1)
        phi_k = torch.concatenate([_softmax(pk, axis=-1), _softmax(-pk, axis=-1)], axis=-1)
        kv = torch.einsum("bhsf,bhsd->bhfd", phi_k, v)
        z  = torch.einsum("bhsf->bhf", phi_k)
        num = torch.einsum("bhqf,bhfd->bhqd", phi_q, kv)
        den = torch.einsum("bhqf,bhf->bhq", phi_q, z)[..., None] + 1e-6
        o = num / den
        return (lambda x, *d: x.permute(*d))(o, 0, 2, 1, 3).reshape(B, S, D) @ wo

    def _B_ref(x, w_gate, w_up, w_down):
        g = _silu(x @ w_gate)
        u = x @ w_up
        return (g * u) @ w_down

    x = A_x
    xn = _layernorm(x, axis=-1)
    return x + _A_ref(xn, A_wqkv, A_w_phi, A_wo) + _B_ref(xn, B_w_gate, B_w_up, B_w_down)
```

```python
import re

class Asm:
    def __init__(self):
        self.l = []
        self._n = 0
    def __call__(self, s):
        for ln in s.split("\n"):
            ln = ln.strip()
            if ln: self.l.append(ln)
    def label(self, s): self.l.append(s + ":")
    def uniq(self, p="L"):
        self._n += 1
        return f"{p}_{self._n}"
    def cmt(self, s): self.l.append("; " + s)

_reg = re.compile(r"^(v|s|a)(\d+)$|^(v|s|a)\[(\d+):(\d+)\]$")
def regs(op):
    op = op.strip()
    if op.startswith("-"): op = op[1:]
    if op.startswith("abs(") : op = op[4:-1]
    if op.startswith("|") and op.endswith("|"): op = op[1:-1]
    m = _reg.match(op)
    if m:
        if m.group(1): return {(m.group(1), int(m.group(2)))}
        return {(m.group(3), i) for i in range(int(m.group(4)), int(m.group(5)) + 1)}
    if op in ("vcc", "vcc_lo", "vcc_hi"): return {("vcc", 0)}
    if op in ("exec", "exec_lo", "exec_hi"): return {("exec", 0)}
    if op == "m0": return {("m0", 0)}
    return set()

TRANS = ("v_exp_f32", "v_log_f32", "v_rcp_f32", "v_rsq_f32", "v_sqrt_f32", "v_sin_f32", "v_cos_f32", "v_rcp_iflag_f32")
RMW = ("v_fmac_f32", "v_dot2c_f32_bf16", "v_fmamk", "v_pk_fmac", "v_writelane_b32", "v_mac")

class Ins:
    def __init__(self, text):
        self.text = text
        t = text.split(";")[0].strip()
        self.islabel = t.endswith(":")
        self.isdir = t.startswith(".")
        self.op = t.split()[0] if t and not self.islabel else ""
        opn = self.op
        for suf in ("_e32", "_e64", "_dpp", "_sdwa"):
            if opn.endswith(suf): opn = opn[:-len(suf)]
        self.base = opn
        rest = t[len(self.op):].strip() if not self.islabel else ""
        ops, depth, cur = [], 0, ""
        for ch in rest:
            if ch in "[(": depth += 1
            if ch in "])": depth -= 1
            if ch == "," and depth == 0: ops.append(cur.strip()); cur = ""
            else: cur += ch
        if cur.strip(): ops.append(cur.strip())
        self.mods = ""
        if ops:
            parts = ops[-1].split(None, 1)
            if len(parts) == 2 and not parts[0].endswith(":"):
                ops[-1] = parts[0]; self.mods = parts[1]
        self.ops = ops
        self.w, self.r = set(), set()
        self.kind = "other"
        o = self.base
        R = lambda i: regs(ops[i]) if i < len(ops) else set()
        if self.islabel or self.isdir or not o: self.kind = "none"; return
        if o.startswith("v_mfma"):
            self.kind = "mfma"; self.w = R(0); self.r = R(1) | R(2) | R(3)
            self.srcab = R(1) | R(2); self.srcc = R(3)
            self.passes = 8 if "32x32x16" in o or "32x32x8" in o else (2 if "4x4x4" in o else 4)
        elif o.startswith("v_cmp"):
            self.kind = "valu"; self.w = R(0); self.r = R(1) | R(2)
            if o.startswith("v_cmpx"): self.w |= {("exec", 0)}
        elif o in ("v_readfirstlane_b32", "v_readlane_b32"):
            self.kind = "valu"; self.w = R(0); self.r = R(1) | R(2); self.lane_read = True
        elif o.startswith("v_permlane") and "swap" in o:
            self.kind = "valu"; self.w = R(0) | R(1); self.r = R(0) | R(1); self.perm = True
        elif o.startswith("v_"):
            self.kind = "valu"; self.w = R(0)
            start = 1
            if o in ("v_add_co_u32", "v_sub_co_u32", "v_addc_co_u32", "v_subb_co_u32"):
                self.w |= R(1); start = 2
            for i in range(start, len(ops)): self.r |= R(i)
            if any(o.startswith(x) for x in RMW): self.r |= R(0)
            if o == "v_cndmask_b32" and len(ops) == 3: self.r |= {("vcc", 0)}
            self.trans = o in TRANS
            self.dpp = "row_" in self.mods or "quad_perm" in self.mods or self.op.endswith("_dpp")
        elif o.startswith("ds_"):
            self.kind = "ds"
            if o.startswith("ds_read") or o.startswith("ds_bpermute") or o.startswith("ds_permute") or o.startswith("ds_swizzle"):
                self.w = R(0)
                for i in range(1, len(ops)): self.r |= R(i)
            else:
                for i in range(len(ops)): self.r |= R(i)
        elif o.startswith("buffer_") or o.startswith("global_"):
            self.kind = "vmem"
            islds = " lds" in (" " + self.mods) or "_lds_" in o
            if o.startswith("buffer_inv") or o.startswith("buffer_wbl2"): pass
            elif islds:
                for i in range(len(ops)): self.r |= R(i)
                self.r |= {("m0", 0)}; self.ldsdma = True
            elif "load" in o:
                self.w = R(0)
                for i in range(1, len(ops)): self.r |= R(i)
                if "d16" in o: self.r |= R(0)
            else:
                for i in range(len(ops)): self.r |= R(i)
                self.store = True
                self.wide = ("x3" in o or "x4" in o)
                self.data = R(0) if o.startswith("buffer_") else R(1)
                if "atomic" in o and "sc0" in self.mods: self.w = R(0)
        elif o.startswith("s_"):
            self.kind = "salu"
            if o in ("s_nop",): self.kind = "nop"; self.n = int(ops[0], 0) + 1
            elif o.startswith("s_waitcnt") or o in ("s_barrier", "s_endpgm", "s_sleep", "s_setprio") or o.startswith("s_cbranch") or o == "s_branch":
                self.kind = "ctl"
            elif o.startswith("s_cmp") or o.startswith("s_bitcmp"):
                for i in range(len(ops)): self.r |= R(i)
            elif o.startswith("s_load") or o.startswith("s_memtime") or o.startswith("s_memrealtime"):
                self.kind = "smem"; self.w = R(0)
                for i in range(1, len(ops)): self.r |= R(i)
            else:
                self.w = R(0)
                for i in range(1, len(ops)): self.r |= R(i)
                if "saveexec" in o: self.w |= {("exec", 0)}

def states(ins):
    if ins.kind == "none": return 0
    if ins.kind == "nop": return ins.n
    return 1

def need(prod, cons):
    n = 0
    pk, ck = prod.kind, cons.kind
    vw = {x for x in prod.w if x[0] in ("v", "a")}
    sw = {x for x in prod.w if x[0] in ("s", "vcc")}
    if pk == "valu":
        if ck == "mfma" and vw & cons.r: n = max(n, 2)
        if ck == "valu":
            if getattr(prod, "trans", False) and vw & cons.r and not getattr(cons, "trans", False): n = max(n, 1)
            if getattr(prod, "trans", False) and vw & cons.r and getattr(cons, "trans", False): n = max(n, 1)
            if getattr(cons, "perm", False) and vw & cons.r: n = max(n, 2)
            if getattr(cons, "dpp", False) and vw & cons.r: n = max(n, 2)
            if getattr(cons, "lane_read", False) and vw & cons.r: n = max(n, 1)
            if sw & cons.r: n = max(n, 2 if not getattr(cons, "lane_read", False) else 4)
            if ("exec", 0) in prod.w: n = max(n, 4 if (getattr(cons, "lane_read", False) or getattr(cons, "perm", False)) else (5 if getattr(cons, "dpp", False) else 0))
        if prod.base.startswith("v_dot") and ck in ("valu", "mfma", "vmem", "ds") and vw & (cons.r | cons.w):
            if not (cons.base == prod.base and vw == {x for x in cons.w if x[0] == "v"} and not (vw & (regs(cons.ops[1]) | regs(cons.ops[2])))):
                n = max(n, 3)
        if ck == "vmem" and sw & cons.r: n = max(n, 5)
        if ck == "mfma" and ("exec", 0) in prod.w: n = max(n, 4)
        if ck in ("salu", "ctl") and sw & cons.r: n = max(n, 4)
    if pk == "salu":
        if ("m0", 0) in prod.w and ck == "vmem" and getattr(cons, "ldsdma", False): n = max(n, 1)
    if pk == "mfma":
        P = prod.passes
        raw = {2: 5, 4: 8, 8: 12}[P]
        if ck == "mfma":
            if vw & cons.srcab: n = max(n, raw)
            ov = vw & cons.srcc
            if ov:
                if cons.srcc == prod.w and cons.passes == P: n = max(n, 2 if P == 2 else 0)
                else: n = max(n, {2: 4, 4: 6, 8: 10}[P])
            elif vw & cons.w: n = max(n, {2: 4, 4: 6, 8: 10}[P])
        elif ck in ("valu", "vmem", "ds"):
            if vw & (cons.r | cons.w): n = max(n, raw)
            if ck == "valu" and prod.srcc & cons.w: n = max(n, {2: 1, 4: 3, 8: 7}[P])
    if pk == "vmem" and getattr(prod, "store", False) and getattr(prod, "wide", False):
        if ck == "valu" and prod.data & cons.w: n = max(n, 2)
        elif ck in ("ds", "vmem", "mfma") and prod.data & cons.w: n = max(n, 1)
    return n

def pad_hazards(lines, window=20, verbose=False):
    out = []
    hist = []
    added = 0
    for text in lines:
        ins = Ins(text)
        if ins.kind == "none":
            out.append(text); continue
        req = 0
        dist = 0
        for p in reversed(hist):
            n = need(p, ins)
            if n > dist: req = max(req, n - dist)
            dist += states(p)
            if dist >= window: break
        if req > 0:
            k = req
            while k > 0:
                m = min(k, 16)
                nop = Ins(f"s_nop {m-1}")
                out.append(f"s_nop {m-1}")
                hist.append(nop); k -= m
            added += req
            if verbose: print("pad", req, "before", text)
        out.append(text)
        hist.append(ins)
        if len(hist) > 40: hist = hist[-40:]
    return out, added
```

```python
import sys
sys.path.insert(0, "dev")
from asmlib import Asm, pad_hazards

KNAME = "parallel_sum__linear_kernel_hedgehog__swiglu_ffn__prompt_kernel"

HO_TT = 136 * 1024
HO_SIZE = 64 * HO_TT
KV_OFF = HO_SIZE
KV_SIZE = 32 * 4096
ST_OFF = KV_OFF + KV_SIZE
ST_SIZE = 2048 * 8
CNT_OFF = ST_OFF + ST_SIZE
WS_SIZE = CNT_OFF + 24 * 256
DBG_OFF = WS_SIZE
DBG_SIZE = 256 * 8 * 64 + (1 << 22)
OOB = 0x40000000
LOG2E = 1.4426950408889634

XST = 32768
WARR = 10240
WA1 = WARR + 128
WST = 2 * WARR + 128
WBASE = 3 * XST
L_ZERO = WBASE + 3 * WST
L_CSUM = L_ZERO + 128
L_DUMMY = L_CSUM + 640 + 128
LDS_TOTAL = 163840
assert L_DUMMY + 1024 <= LDS_TOTAL
L_PHI = 32768
PHI_ROW = 320
L_V = 114688
V_ROW = 176
L_KVA = 32768

PX, PQKV, PPHI, PWO, PBX, PWG, PWU, PWD, POUT, PDBG, PWS = 4, 6, 8, 10, 12, 14, 16, 18, 20, 22, 24
sX, sW, sWS, sDBG, sT0, sT1 = 28, 32, 36, 40, 44, 48
sWAVE, sRB, sTYPE, sJOB, sJIDX, sC = 52, 53, 54, 55, 56, 57
sXOFF, sXDST, sTMP, sWOFF, sWDST = 58, 59, 60, 61, 62
sSTRIDE, sWSTp, sWSTm, sXSTp, sXSTm, sMASK = 63, 64, 65, 66, 67, 68
sWEND, sXEND, sWBEG, sXBEG, sRST, sDW, sDX, sWCH = 69, 70, 71, 72, 73, 74, 75, 76
sW3F, sT2, sT3, sT4, sT5, sOOB, sSPEC = 77, 78, 79, 80, 81, 82, 83
sJG, sSLOT, sXCD, sTAU = 84, 85, 86, 87
sEX = 88
sTS = 90
sA, sB, sCc, sD = 94, 95, 96, 97

def srd(r): return f"s[{r}:{r+3}]"

vLANE = 1
vXA = [10, 11, 12, 13]
vWA = 14
vCA0, vCA2 = 15, 21
vXS = [16, 17]
vWS = [18, 19, 20]
vSTAT = 22
vPOLL = 24
CSA = 32
CST = 40
WPHI = 52
WRAW = 104
XF = [128, 132]
WF = 136
ACC = 176

def vr(a, n=1): return f"v{a}" if n == 1 else f"v[{a}:{a+n-1}]"
def f2u(x):
    import struct
    return struct.unpack("<I", struct.pack("<f", x))[0]

class G:
    def __init__(self, opts):
        self.a = Asm()
        self.o = opts
        self.ool = Asm()
        self.ool._n = 100000

    def build_srd(self, r, ptr, nbytes, a=None):
        a = a or self.a
        a(f"s_mov_b32 s{r}, s{ptr}")
        a(f"s_mov_b32 s{r+1}, s{ptr+1}")
        a(f"s_mov_b32 s{r+2}, {nbytes}")
        a(f"s_mov_b32 s{r+3}, 0x00020000")

    def ts(self, idx, a=None):
        if not self.o.get("ts"): return
        a = a or self.a
        a(f"s_memtime s[{sTS}:{sTS+1}]")
        a(f"s_lshl_b32 s{sTS+2}, s2, 3")
        a(f"s_add_u32 s{sTS+2}, s{sTS+2}, s{sWAVE}")
        a(f"s_lshl_b32 s{sTS+2}, s{sTS+2}, 6")
        a(f"s_add_u32 s{sTS+2}, s{sTS+2}, {DBG_OFF + idx*4}")
        a(f"v_mov_b32 v3, {OOB}")
        a(f"v_cmp_eq_u32 vcc, 0, v{vLANE}")
        a(f"v_cndmask_b32 v3, v3, v{vLANE}, vcc")
        a("s_waitcnt lgkmcnt(0)")
        a(f"v_mov_b32 v2, s{sTS}")
        a(f"buffer_store_dword v2, v3, {srd(sWS)}, s{sTS+2} offen")

    def wave_sum(self, v, t):
        a = self.a
        for r in (8, 4, 2, 1):
            a(f"v_add_f32_dpp v{v}, v{v}, v{v} row_ror:{r} row_mask:0xf bank_mask:0xf")
        a(f"v_mov_b32 v{t}, v{v}")
        a(f"v_permlane16_swap_b32 v{v}, v{t}")
        a(f"v_add_f32 v{v}, v{v}, v{t}")
        a(f"v_mov_b32 v{t}, v{v}")
        a(f"v_permlane32_swap_b32 v{v}, v{t}")
        a(f"v_add_f32 v{v}, v{v}, v{t}")

    def prologue(self):
        a = self.a
        a(f"s_load_dwordx16 s[4:19], s[0:1], 0")
        a(f"s_load_dwordx4 s[20:23], s[0:1], 64")
        a(f"s_load_dwordx2 s[24:25], s[0:1], 80")
        a("s_cmp_ge_u32 s2, 256")
        a("s_cbranch_scc1 L_end")
        a("v_lshrrev_b32 v2, 6, v0")
        a(f"v_and_b32 v{vLANE}, 63, v0")
        a(f"v_readfirstlane_b32 s{sWAVE}, v2")
        a(f"s_and_b32 s{sXCD}, s2, 7")
        a(f"s_lshr_b32 s{sT2}, s2, 3")
        a(f"s_and_b32 s{sRB}, s{sXCD}, 1")
        a(f"s_lshl_b32 s{sRB}, s{sRB}, 2")
        a(f"s_and_b32 s{sT3}, s{sT2}, 3")
        a(f"s_add_u32 s{sRB}, s{sRB}, s{sT3}")
        a(f"s_lshr_b32 s{sSLOT}, s{sT2}, 2")
        a(f"s_lshr_b32 s{sJG}, s{sXCD}, 1")
        a(f"s_lshl_b32 s{sJIDX}, s{sJG}, 3")
        a(f"s_add_u32 s{sJIDX}, s{sJIDX}, s{sSLOT}")
        a(f"s_mul_i32 s{sT3}, s{sJG}, 5")
        a(f"s_add_u32 s{sT3}, s{sT3}, s{sSLOT}")
        a(f"s_sub_u32 s{sJOB}, s{sT3}, 3")
        a(f"s_mov_b32 s{sTYPE}, 2")
        a(f"s_cmp_eq_u32 s{sSLOT}, 2")
        a(f"s_cselect_b32 s{sTYPE}, 1, s{sTYPE}")
        a(f"s_cselect_b32 s{sJOB}, s{sJG}, s{sJOB}")
        a(f"s_lshl_b32 s{sT3}, s{sJG}, 1")
        a(f"s_add_u32 s{sT3}, s{sT3}, s{sSLOT}")
        a(f"s_cmp_lt_u32 s{sSLOT}, 2")
        a(f"s_cselect_b32 s{sTYPE}, 0, s{sTYPE}")
        a(f"s_cselect_b32 s{sJOB}, s{sT3}, s{sJOB}")
        a(f"s_lshr_b32 s{sA}, s{sWAVE}, 2")
        a(f"s_mul_i32 s{sT3}, s{sJOB}, 5")
        a(f"s_lshl_b32 s{sT4}, s{sJOB}, 2")
        a(f"s_add_u32 s{sT4}, s{sT4}, 16")
        a(f"s_cmp_lt_u32 s{sJOB}, 16")
        a(f"s_cselect_b32 s{sT5}, s{sT3}, s{sT4}")
        a(f"s_mov_b32 s{sB}, s{sT5}")
        a(f"s_lshl_b32 s{sWOFF}, s{sT5}, 5")
        a(f"s_mul_i32 s{sT3}, s{sJOB}, 160")
        a(f"s_mul_i32 s{sT4}, s{sA}, 1280")
        a(f"s_add_u32 s{sT3}, s{sT3}, s{sT4}")
        a(f"s_add_u32 s{sT3}, s{sT3}, 1280")
        a(f"s_cmp_eq_u32 s{sTYPE}, 0")
        a(f"s_cselect_b32 s{sWOFF}, s{sT3}, s{sWOFF}")
        a(f"s_mul_i32 s{sT3}, s{sJOB}, 320")
        a(f"s_mul_i32 s{sT4}, s{sA}, 160")
        a(f"s_add_u32 s{sT3}, s{sT3}, s{sT4}")
        a(f"s_cmp_eq_u32 s{sTYPE}, 1")
        a(f"s_cselect_b32 s{sWOFF}, s{sT3}, s{sWOFF}")
        a(f"s_movk_i32 s{sSTRIDE}, 3840")
        a(f"s_cmp_eq_u32 s{sTYPE}, 2")
        a(f"s_cselect_b32 s{sSTRIDE}, 3072, s{sSTRIDE}")
        a(f"s_lshl_b32 s{sWCH}, s{sSTRIDE}, 6")
        a(f"v_lshrrev_b32 v3, 3, v{vLANE}")
        a(f"v_and_b32 v4, 7, v{vLANE}")
        a(f"v_lshrrev_b32 v5, 4, v{vLANE}")
        a(f"v_mul_u32_u24 v6, 1280, v3")
        a(f"v_xor_b32 v7, v5, v4")
        a(f"v_lshl_add_u32 v{vXS[0]}, v7, 4, v6")
        a(f"v_add_u32 v5, 4, v5")
        a(f"v_xor_b32 v7, v5, v4")
        a(f"v_lshl_add_u32 v{vXS[1]}, v7, 4, v6")
        a(f"s_lshl_b32 s{sT2}, s{sRB}, 8")
        a(f"s_lshl_b32 s{sT3}, s{sWAVE}, 5")
        a(f"s_add_u32 s{sT2}, s{sT2}, s{sT3}")
        a(f"s_mul_i32 s{sXOFF}, s{sT2}, 1280")
        a(f"s_lshl_b32 s{sXBEG}, s{sWAVE}, 12")
        a(f"s_and_b32 s{sT2}, s{sWAVE}, 3")
        a(f"s_cmp_lt_u32 s{sT2}, 2")
        a(f"s_cselect_b32 s{sW3F}, 1, 0")
        a(f"s_lshl_b32 s{sT3}, s{sT2}, 6")
        for j in range(3):
            a(f"v_add_u32 v5, s{sT3}, v{vLANE}")
            if j: a(f"v_add_u32 v5, {j*256}, v5")
            a("v_mul_u32_u24 v6, 6554, v5")
            a("v_lshrrev_b32 v6, 16, v6")
            a("v_mul_u32_u24 v7, 10, v6")
            a("v_sub_u32 v7, v5, v7")
            a(f"v_mul_u32_u24 v6, s{sSTRIDE}, v6")
            a(f"v_lshl_add_u32 v{vWS[j]}, v7, 4, v6")
        a(f"s_mul_i32 s{sWBEG}, s{sA}, {WA1}")
        a(f"s_lshl_b32 s{sT3}, s{sT2}, 10")
        a(f"s_add_u32 s{sWBEG}, s{sWBEG}, s{sT3}")
        a(f"s_add_u32 s{sWBEG}, s{sWBEG}, {WBASE}")
        a(f"v_lshlrev_b32 v8, 5, v{vLANE}")
        a(f"v_mov_b32 v9, {OOB}")
        a(f"v_cmp_gt_u32 vcc, 40, v{vLANE}")
        a(f"v_cndmask_b32 v8, v9, v8, vcc")
        a(f"s_lshl_b32 s{sT2}, s{sRB}, 8")
        a(f"s_lshl_b32 s{sT3}, s{sJIDX}, 3")
        a(f"s_add_u32 s{sT2}, s{sT2}, s{sT3}")
        a(f"s_add_u32 s{sD}, s{sT2}, s{sWAVE}")
        a(f"s_mul_i32 s{sT2}, s{sD}, 1280")
        a(f"s_mov_b32 s{sOOB}, {OOB}")
        a("s_waitcnt lgkmcnt(0)")
        self.build_srd(sX, PX, 2621440)
        a(f"buffer_load_dwordx4 v[80:83], v8, {srd(sX)}, s{sT2} offen")
        a(f"buffer_load_dwordx4 v[84:87], v8, {srd(sX)}, s{sT2} offen offset:16")
        a(f"s_cmp_eq_u32 s{sA}, 0")
        a(f"s_cselect_b32 s{sW}, s{PWG}, s{PWU}")
        a(f"s_cselect_b32 s{sW+1}, s{PWG+1}, s{PWU+1}")
        a(f"s_cmp_eq_u32 s{sTYPE}, 2")
        a(f"s_cselect_b32 s{sW}, s{sW}, s{PQKV}")
        a(f"s_cselect_b32 s{sW+1}, s{sW+1}, s{PQKV+1}")
        a(f"s_mov_b32 s{sT3}, 2457600")
        a(f"s_cselect_b32 s{sW+2}, 1966080, s{sT3}")
        a(f"s_mov_b32 s{sW+3}, 0x00020000")
        a(f"s_mov_b32 s{sWDST}, s{sWBEG}")
        a(f"s_mov_b32 s{sXDST}, s{sXBEG}")
        for c in range(2):
            for j in range(3): self.dma_w(j)
            for q in range(4): self.dma_x(q)
            a(f"s_add_u32 s{sWOFF}, s{sWOFF}, s{sWCH}")
            a(f"s_add_u32 s{sWDST}, s{sWDST}, {WST}")
            a(f"s_add_u32 s{sXOFF}, s{sXOFF}, 128")
            a(f"s_add_u32 s{sXDST}, s{sXDST}, {XST}")
        self.build_srd(sWS, PWS, WS_SIZE + (DBG_SIZE if self.o.get("dev") else 0))
        self.build_srd(sDBG, PDBG, 256)
        self.ts(0)
        a(f"s_cmp_eq_u32 s{sTYPE}, 2")
        a("s_cbranch_scc1 L_nophi")
        self.build_srd(sT0, PPHI, 25600)
        self.wphi_gather(0)
        a(f"s_cmp_eq_u32 s{sTYPE}, 0")
        a("s_cbranch_scc1 L_phikv")
        self.wphi_gather(1)
        nts = 1 if self.o.get("ts") else 0
        a(f"s_waitcnt vmcnt({14+16+nts})")
        a("s_branch L_phidone")
        a.label("L_phikv")
        a(f"s_waitcnt vmcnt({14+8+nts})")
        a("s_branch L_phidone")
        a.label("L_nophi")
        a(f"s_waitcnt vmcnt({14+nts})")
        a.label("L_phidone")
        for i in range(8):
            a(f"v_lshlrev_b32 v{88+2*i}, 16, v{80+i}")
            a(f"v_and_b32 v{89+2*i}, 0xffff0000, v{80+i}")
        a("v_add_f32 v2, v88, v89")
        for i in range(2, 16): a(f"v_add_f32 v2, v2, v{88+i}")
        self.wave_sum(2, 3)
        a(f"v_mul_f32 v2, {f2u(1.0/640):#x}, v2")
        for i in range(16): a(f"v_sub_f32 v{88+i}, v{88+i}, v2")
        a("v_mul_f32 v4, v88, v88")
        for i in range(1, 16): a(f"v_fmac_f32 v4, v{88+i}, v{88+i}")
        a(f"v_cmp_gt_u32 vcc, 40, v{vLANE}")
        a("v_cndmask_b32 v4, 0, v4, vcc")
        self.wave_sum(4, 3)
        a(f"v_mov_b32 v5, {f2u(1e-5):#x}")
        a(f"v_fmac_f32 v5, {f2u(1.0/640):#x}, v4")
        a("v_mov_b32 v4, v2")
        a(f"v_mov_b32 v3, {OOB}")
        a(f"v_cmp_eq_u32 vcc, 0, v{vLANE}")
        a(f"v_cndmask_b32 v6, v3, v{vLANE}, vcc")
        a(f"s_lshl_b32 s{sT2}, s{sD}, 3")
        a(f"s_add_u32 s{sT2}, s{sT2}, {ST_OFF}")
        a(f"buffer_store_dwordx2 v[4:5], v6, {srd(sWS)}, s{sT2} offen sc1")
        a("v_mov_b32 v60, 0"); a("v_mov_b32 v61, 0"); a("v_mov_b32 v62, 0"); a("v_mov_b32 v63, 0")
        a(f"s_cmp_eq_u32 s{sTYPE}, 0")
        a("s_cbranch_scc0 L_nozkv")
        a(f"s_cmp_eq_u32 s{sRB}, 0")
        a("s_cbranch_scc0 L_nozkv")
        a(f"s_lshl_b32 s{sT2}, s{sJOB}, 14")
        a(f"s_lshl_b32 s{sT3}, s{sWAVE}, 11")
        a(f"s_add_u32 s{sT2}, s{sT2}, s{sT3}")
        a(f"s_add_u32 s{sT2}, s{sT2}, {KV_OFF}")
        a(f"v_lshlrev_b32 v7, 4, v{vLANE}")
        a(f"buffer_store_dwordx4 v[60:63], v7, {srd(sWS)}, s{sT2} offen sc1")
        a(f"buffer_store_dwordx4 v[60:63], v7, {srd(sWS)}, s{sT2} offen offset:1024 sc1")
        a(f"s_lshl_b32 s{sT2}, s{sJOB}, 8")
        a(f"s_add_u32 s{sT2}, s{sT2}, {CNT_OFF + 16*256}")
        a(f"buffer_store_dword v60, v6, {srd(sWS)}, s{sT2} offen sc1")
        a.label("L_nozkv")
        a(f"s_cmp_eq_u32 s{sJIDX}, 3")
        a("s_cbranch_scc0 L_nozh")
        a(f"s_lshl_b32 s{sT2}, s{sRB}, 8")
        a(f"s_add_u32 s{sT2}, s{sT2}, {CNT_OFF}")
        a(f"buffer_store_dword v60, v6, {srd(sWS)}, s{sT2} offen sc1")
        a(f"s_add_u32 s{sT2}, s{sT2}, {8*256}")
        a(f"buffer_store_dword v60, v6, {srd(sWS)}, s{sT2} offen sc1")
        a.label("L_nozh")
        a(f"v_and_b32 v5, 31, v{vLANE}")
        a(f"v_lshrrev_b32 v6, 5, v{vLANE}")
        a("v_lshrrev_b32 v7, 1, v5")
        a("v_and_b32 v7, 7, v7")
        a("v_xor_b32 v7, v7, v6")
        a("v_lshlrev_b32 v7, 4, v7")
        a("v_lshl_add_u32 v5, v5, 7, v7")
        a(f"v_add_u32 v5, s{sXBEG}, v5")
        for ks in range(4): a(f"v_xor_b32 v{vXA[ks]}, {ks<<5}, v5")
        a(f"v_lshrrev_b32 v5, 4, v{vLANE}")
        a("v_and_b32 v6, 1, v5")
        a(f"v_mul_u32_u24 v6, {WA1}, v6")
        a("v_lshrrev_b32 v5, 1, v5")
        a("v_lshlrev_b32 v5, 3, v5")
        a(f"v_bfe_u32 v7, v{vLANE}, 2, 2")
        a("v_add_u32 v5, v5, v7")
        a("v_mul_u32_u24 v5, 160, v5")
        a(f"v_and_b32 v7, 3, v{vLANE}")
        a("v_lshl_add_u32 v5, v7, 3, v5")
        a("v_add_u32 v5, v5, v6")
        a(f"v_add_u32 v{vWA}, {WBASE}, v5")
        a(f"v_mul_u32_u24 v5, 3277, v{vLANE}")
        a("v_lshrrev_b32 v5, 16, v5")
        a("v_mul_u32_u24 v6, 20, v5")
        a(f"v_sub_u32 v6, v{vLANE}, v6")
        a("v_cmp_le_u32 vcc, 10, v6")
        a(f"v_mov_b32 v7, {WA1 - 160}")
        a("v_cndmask_b32 v7, 0, v7, vcc")
        a("v_lshl_add_u32 v7, v6, 4, v7")
        a(f"s_lshl_b32 s{sT2}, s{sWAVE}, 3")
        a(f"v_add_u32 v8, s{sT2}, v5")
        a("v_mul_u32_u24 v8, 160, v8")
        a("v_add_u32 v8, v8, v7")
        a(f"v_add_u32 v8, {WBASE}, v8")
        a(f"v_mov_b32 v9, {L_ZERO}")
        a("v_cmp_gt_u32 vcc, 3, v5")
        a(f"v_cndmask_b32 v{vCA0}, v9, v8, vcc")
        a("v_add_u32 v8, 960, v8")
        a("v_cmp_gt_u32 vcc, 2, v5")
        a(f"v_cndmask_b32 v{vCA2}, v9, v8, vcc")
        a("v_cndmask_b32 v65, 0, -1, vcc")
        a("v_cmp_gt_u32 vcc, 3, v5")
        a("v_cndmask_b32 v64, 0, -1, vcc")
        a(f"v_lshlrev_b32 v7, 2, v{vLANE}")
        a(f"v_add_u32 v7, {L_ZERO}, v7")
        a(f"s_cmp_eq_u32 s{sWAVE}, 0")
        a("s_cbranch_scc0 L_nozl")
        a("ds_write_b32 v7, v60")
        a("ds_write_b32 v7, v60 offset:256")
        a("ds_write_b32 v7, v60 offset:512")
        a.label("L_nozl")
        for i in range(8): a(f"v_mov_b32 v{CSA+i}, 0")
        for i in range(80): a(f"v_mov_b32 v{ACC+i}, 0")
        a(f"s_mov_b32 s{sWSTp}, {WST}"); a(f"s_mov_b32 s{sWSTm}, {(-2*WST) & 0xffffffff}")
        a(f"s_mov_b32 s{sXSTp}, {XST}"); a(f"s_mov_b32 s{sXSTm}, {(-2*XST) & 0xffffffff}")
        a(f"s_mov_b32 s{sMASK}, 0xffff0000")
        a(f"s_add_u32 s{sWEND}, s{sWBEG}, {3*WST}")
        a(f"s_add_u32 s{sXEND}, s{sXBEG}, {3*XST}")
        a(f"s_mov_b32 s{sRST}, 0")
        a(f"s_mov_b32 s{sC}, 0")
        a(f"s_mov_b32 s{sSPEC}, {(1<<0)|(1<<6)|(1<<7)}")
        a(f"s_cmp_eq_u32 s{sTYPE}, 2")
        a("s_cbranch_scc1 L_w0f")
        a(f"s_cmp_eq_u32 s{sTYPE}, 0")
        a("s_cbranch_scc1 L_w0k")
        a("s_waitcnt vmcnt(24) lgkmcnt(0)")
        a("s_branch L_w0d")
        a.label("L_w0k")
        a("s_waitcnt vmcnt(16) lgkmcnt(0)")
        a("s_branch L_w0d")
        a.label("L_w0f")
        a("s_waitcnt vmcnt(8) lgkmcnt(0)")
        a.label("L_w0d")
        a("s_barrier")
        self.ts(1)

    def dma_w(self, j):
        a = self.a
        if j < 2:
            a(f"s_add_u32 m0, s{sWDST}, {j*4096}")
            a("s_nop 0")
            a(f"buffer_load_dwordx4 v{vWS[j]}, {srd(sW)}, s{sWOFF} offen lds")
        else:
            a(f"s_add_u32 s{sT2}, s{sWDST}, 8192")
            a(f"s_cmp_lg_u32 s{sW3F}, 0")
            a(f"s_cselect_b32 m0, s{sT2}, {L_DUMMY}")
            a(f"s_cselect_b32 s{sT3}, s{sWOFF}, s{sOOB}")
            a(f"buffer_load_dwordx4 v{vWS[j]}, {srd(sW)}, s{sT3} offen lds")

    def dma_x(self, q):
        a = self.a
        a(f"s_add_u32 m0, s{sXDST}, {q*1024}")
        a(f"s_add_u32 s{sTMP}, s{sXOFF}, {q*8*1280}")
        a(f"buffer_load_dwordx4 v{vXS[q&1]}, {srd(sX)}, s{sTMP} offen lds")

    def wphi_gather(self, which):
        a = self.a
        dst = WPHI + 4 * which
        a(f"s_lshr_b32 s{sT2}, s{sWAVE}, 1")
        a(f"s_and_b32 s{sT3}, s{sWAVE}, 1")
        a(f"s_lshl_b32 s{sT4}, s{sJOB}, 2")
        a(f"s_lshl_b32 s{sT5}, s{sJOB}, 3")
        a(f"s_cmp_eq_u32 s{sTYPE}, 0")
        a(f"s_cselect_b32 s{sT4}, s{sT4}, s{sT5}")
        a(f"s_add_u32 s{sT4}, s{sT4}, s{sT2}")
        if which: a(f"s_add_u32 s{sT4}, s{sT4}, 4")
        a(f"s_mul_i32 s{sT4}, s{sT4}, 800")
        a(f"s_and_b32 s{sT5}, s{sT2}, 1")
        a(f"s_lshl_b32 s{sT3}, s{sT3}, 2")
        a(f"s_sub_u32 s{sT3}, s{sT3}, s{sT5}")
        a(f"v_bfe_u32 v2, v{vLANE}, 3, 2")
        a(f"v_and_b32 v3, 3, v{vLANE}")
        a("v_lshl_add_u32 v2, v2, 2, v3")
        a(f"v_bfe_u32 v3, v{vLANE}, 2, 1")
        a("v_mul_u32_u24 v3, 10, v3")
        a("v_add_u32 v3, v3, v2")
        a(f"v_lshrrev_b32 v4, 5, v{vLANE}")
        a(f"v_add_u32 v4, s{sT3}, v4")
        for jh in range(2):
            if jh: a("v_add_u32 v4, 2, v4")
            a("v_mul_u32_u24 v5, 160, v4")
            a("v_lshl_add_u32 v5, v3, 1, v5")
            a("v_cmp_gt_u32 vcc, 5, v4")
            a(f"v_mov_b32 v6, {OOB}")
            a("v_cndmask_b32 v5, v6, v5, vcc")
            a("v_cmp_gt_u32 vcc, 10, v2")
            a("v_cndmask_b32 v5, v6, v5, vcc")
            for e in range(4):
                d = WRAW + 8 * which + 4 * jh + e
                a(f"buffer_load_ushort v{d}, v5, {srd(sT0)}, s{sT4} offen offset:{e*40}")

    def rd_x(self, ks):
        r = XF[ks & 1]
        self.a(f"ds_read_b128 v[{r}:{r+3}], v{vXA[ks]}")
    def rd_w(self, ks, t):
        r = WF + 4 * t
        self.a(f"ds_read_b64_tr_b16 v[{r}:{r+1}], v{vWA} offset:{ks*2560 + t*32}")
        self.a(f"ds_read_b64_tr_b16 v[{r+2}:{r+3}], v{vWA} offset:{ks*2560 + 640 + t*32}")

    def mainloop(self):
        a = self.a
        self.rd_x(0)
        for t in range(5): self.rd_w(0, t)
        a.label("L_loop")
        cs_ops = []
        for i in range(3):
            for d in range(4):
                src = CST + 4 * i + d
                t0, t1 = 60 + 2 * (d & 1), 61 + 2 * (d & 1)
                cs_ops += [f"v_lshlrev_b32 v{t0}, 16, v{src}", f"v_and_b32 v{t1}, s{sMASK}, v{src}",
                           f"v_add_f32 v{CSA+2*d}, v{CSA+2*d}, v{t0}", f"v_add_f32 v{CSA+2*d+1}, v{CSA+2*d+1}, v{t1}"]
        for ks in range(4):
            xf = XF[ks & 1]
            nks = (ks + 1) & 3
            if ks == 3:
                a(f"s_bitcmp1_b32 s{sSPEC}, s{sC}")
                a("s_cbranch_scc1 L_pre_special")
                a.label("L_pre_back")
                a("s_waitcnt vmcnt(4) lgkmcnt(8)")
                a("s_barrier")
                a(f"v_add_u32 v{vWA}, s{sDW}, v{vWA}")
                a(f"v_add_u32 v{vXA[0]}, s{sDX}, v{vXA[0]}")
                a(f"s_bitcmp1_b32 s{sSPEC}, s{sC}")
                a("s_cbranch_scc1 L_post_special")
                a.label("L_post_back")
            for t in range(5):
                extra = 0
                if ks == 0 and t >= 1: extra = 3 if t >= 1 else 0
                if ks == 1 and t == 0: extra = 0
                n = 8 if t == 0 else 9
                if ks == 0 and t >= 1: n += 3
                if ks == 1 and t == 0: n = 8
                if ks == 1 and t == 0: n = 11
                a(f"s_waitcnt lgkmcnt({min(n, 15)})")
                a(f"v_mfma_f32_32x32x16_bf16 v[{ACC+16*t}:{ACC+16*t+15}], v[{WF+4*t}:{WF+4*t+3}], v[{xf}:{xf+3}], v[{ACC+16*t}:{ACC+16*t+15}]")
                if t == 0: self.rd_x(nks)
                self.rd_w(nks, t)
                if ks == 0 and t == 0:
                    a(f"ds_read_b128 v[{CST}:{CST+3}], v{vCA0}")
                    a(f"ds_read_b128 v[{CST+4}:{CST+7}], v{vCA0} offset:480")
                    a(f"ds_read_b128 v[{CST+8}:{CST+11}], v{vCA2}")
                slot = ks * 5 + t
                if 6 <= slot < 18:
                    k0 = (slot - 6) * 4
                    for op in cs_ops[k0:k0 + 4]: a(op)
                xs = {(0, 1): 0, (0, 4): 1, (1, 2): 2, (2, 0): 3}
                if (ks, t) in xs:
                    q = xs[(ks, t)]
                    if q == 0:
                        a(f"s_cmp_lt_u32 s{sC}, 8")
                        a(f"s_cselect_b32 s{sA}, s{sXOFF}, s{sOOB}")
                    a(f"s_add_u32 m0, s{sXDST}, {q*1024}")
                    a(f"s_add_u32 s{sTMP}, s{sA}, {q*8*1280}")
                    a(f"buffer_load_dwordx4 v{vXS[q&1]}, {srd(sX)}, s{sTMP} offen lds")
                if ks == 2 and t == 1:
                    a(f"s_add_u32 s{sXOFF}, s{sXOFF}, 128")
                    a(f"s_add_u32 s{sXDST}, s{sXDST}, {XST}")
                    a(f"s_cmp_ge_u32 s{sXDST}, s{sXEND}")
                    a(f"s_cselect_b32 s{sXDST}, s{sXBEG}, s{sXDST}")
                if ks == 2 and t == 2:
                    a(f"s_add_u32 s{sRST}, s{sRST}, 1")
                    a(f"s_cmp_eq_u32 s{sRST}, 3")
                    a(f"s_cselect_b32 s{sDW}, s{sWSTm}, s{sWSTp}")
                    a(f"s_cselect_b32 s{sDX}, s{sXSTm}, s{sXSTp}")
                    a(f"s_cselect_b32 s{sRST}, 0, s{sRST}")
                if ks == 3:
                    if t == 0:
                        a(f"s_cmp_lt_u32 s{sC}, 8")
                        a(f"s_cselect_b32 s{sD}, s{sWOFF}, s{sOOB}")
                        a(f"s_add_u32 m0, s{sWDST}, 0")
                        a(f"v_add_u32 v{vXA[1]}, s{sDX}, v{vXA[1]}")
                        a(f"buffer_load_dwordx4 v{vWS[0]}, {srd(sW)}, s{sD} offen lds")
                    if t == 1:
                        a(f"s_add_u32 m0, s{sWDST}, 4096")
                        a(f"v_add_u32 v{vXA[2]}, s{sDX}, v{vXA[2]}")
                        a(f"buffer_load_dwordx4 v{vWS[1]}, {srd(sW)}, s{sD} offen lds")
                    if t == 2:
                        a(f"s_add_u32 s{sT2}, s{sWDST}, 8192")
                        a(f"s_cmp_lg_u32 s{sW3F}, 0")
                        a(f"s_cselect_b32 m0, s{sT2}, {L_DUMMY}")
                        a(f"s_cselect_b32 s{sT3}, s{sD}, s{sOOB}")
                        a(f"buffer_load_dwordx4 v{vWS[2]}, {srd(sW)}, s{sT3} offen lds")
                    if t == 3:
                        a(f"v_and_b32 v66, s{sDW}, v64")
                        a(f"v_and_b32 v67, s{sDW}, v65")
                        a(f"v_add_u32 v{vCA0}, v{vCA0}, v66")
                        a(f"v_add_u32 v{vCA2}, v{vCA2}, v67")
                    if t == 4:
                        a(f"v_add_u32 v{vXA[3]}, s{sDX}, v{vXA[3]}")
                        a(f"s_add_u32 s{sWOFF}, s{sWOFF}, s{sWCH}")
                        a(f"s_add_u32 s{sWDST}, s{sWDST}, {WST}")
                        a(f"s_cmp_ge_u32 s{sWDST}, s{sWEND}")
                        a(f"s_cselect_b32 s{sWDST}, s{sWBEG}, s{sWDST}")
        a(f"s_add_u32 s{sC}, s{sC}, 1")
        a(f"s_cmp_lt_u32 s{sC}, 10")
        a("s_cbranch_scc1 L_loop")
        o = self.ool
        o.label("L_pre_special")
        o(f"s_cmp_eq_u32 s{sC}, 7")
        o("s_cbranch_scc0 L_pre_back")
        o(f"s_cmp_eq_u32 s{sWAVE}, 0")
        o("s_cbranch_scc0 L_pre_back")
        o(f"s_mov_b32 s{sT2}, 0")
        o.label("L_spin_st")
        o("s_waitcnt vmcnt(0)")
        o(f"v_and_b32 v2, v{vPOLL}, v{vPOLL+1}")
        for i in range(2, 8): o(f"v_and_b32 v2, v2, v{vPOLL+i}")
        o("v_and_b32 v2, 32, v2")
        o("s_nop 1")
        o(f"v_readfirstlane_b32 s{sT3}, v2")
        o("s_nop 3")
        o(f"s_cmp_eq_u32 s{sT3}, 32")
        o("s_cbranch_scc1 L_pre_back")
        o(f"s_add_u32 s{sT2}, s{sT2}, 1")
        o(f"s_cmp_gt_u32 s{sT2}, 200000")
        o("s_cbranch_scc1 L_pre_back")
        o("s_sleep 4")
        o(f"v_mov_b32 v2, 0")
        o(f"buffer_load_dwordx4 v[{vPOLL}:{vPOLL+3}], v2, {srd(sDBG)}, 0 offen sc1")
        o(f"buffer_load_dwordx4 v[{vPOLL+4}:{vPOLL+7}], v2, {srd(sDBG)}, 0 offen offset:16 sc1")
        o("s_branch L_spin_st")
        o.label("L_post_special")
        o(f"s_cmp_eq_u32 s{sC}, 7")
        o("s_cbranch_scc1 L_post7")
        o(f"s_cmp_eq_u32 s{sWAVE}, 0")
        o("s_cbranch_scc0 L_post_back")
        o(f"s_cmp_eq_u32 s{sC}, 0")
        o("s_cbranch_scc0 L_post6")
        o(f"v_mov_b32 v2, 1")
        o(f"v_mov_b32 v3, {OOB}")
        o(f"v_cmp_eq_u32 vcc, 0, v{vLANE}")
        o("s_nop 1")
        o(f"v_cndmask_b32 v3, v3, v{vLANE}, vcc")
        o(f"s_lshl_b32 s{sT2}, s{sRB}, 2")
        o(f"buffer_atomic_add v2, v3, {srd(sDBG)}, s{sT2} offen")
        o("s_branch L_post_back")
        o.label("L_post6")
        o(f"v_mov_b32 v2, 0")
        o(f"buffer_load_dwordx4 v[{vPOLL}:{vPOLL+3}], v2, {srd(sDBG)}, 0 offen sc1")
        o(f"buffer_load_dwordx4 v[{vPOLL+4}:{vPOLL+7}], v2, {srd(sDBG)}, 0 offen offset:16 sc1")
        o("s_branch L_post_back")
        o.label("L_post7")
        o(f"v_and_b32 v2, 31, v{vLANE}")
        o("v_lshlrev_b32 v2, 3, v2")
        o(f"s_lshl_b32 s{sT2}, s{sRB}, 8")
        o(f"s_lshl_b32 s{sT3}, s{sWAVE}, 5")
        o(f"s_add_u32 s{sT2}, s{sT2}, s{sT3}")
        o(f"s_lshl_b32 s{sT2}, s{sT2}, 3")
        o(f"s_add_u32 s{sT2}, s{sT2}, {ST_OFF}")
        o(f"buffer_load_dwordx2 v[{vSTAT}:{vSTAT+1}], v2, {srd(sWS)}, s{sT2} offen sc1")
        o("s_branch L_post_back")

    def epi_common(self):
        a = self.a
        a("s_waitcnt vmcnt(0) lgkmcnt(0)")
        self.ts(2)
        a(f"v_mul_u32_u24 v5, 3277, v{vLANE}")
        a("v_lshrrev_b32 v5, 16, v5")
        a("v_mul_u32_u24 v5, 20, v5")
        a(f"v_sub_u32 v5, v{vLANE}, v5")
        a("v_lshlrev_b32 v5, 5, v5")
        a(f"v_add_u32 v5, {L_CSUM}, v5")
        for e in range(8): a(f"ds_add_f32 v5, v{CSA+e} offset:{e*4}")
        a(f"s_cmp_eq_u32 s{sTYPE}, 2")
        a("s_cbranch_scc1 L_nowphi")
        a(f"v_lshlrev_b32 v6, 4, v{vLANE}")
        a(f"v_add_u32 v6, s{sXBEG}, v6")
        for i in range(8): a(f"v_lshl_or_b32 v{WPHI+i}, v{WRAW+2*i+1}, 16, v{WRAW+2*i}")
        a(f"ds_write_b128 v6, v[{WPHI}:{WPHI+3}]")
        a(f"ds_write_b128 v6, v[{WPHI+4}:{WPHI+7}] offset:1024")
        a.label("L_nowphi")
        a(f"v_rsq_f32 v24, v{vSTAT+1}")
        a(f"v_sub_f32 v2, 0, v{vSTAT}")
        a("v_cvt_pk_bf16_f32 v60, v2, v2")
        a(f"v_and_b32 v3, s{sMASK}, v60")
        a("v_sub_f32 v3, v2, v3")
        a("v_cvt_pk_bf16_f32 v61, v3, 0")
        a("v_mov_b32 v62, 0"); a("v_mov_b32 v63, 0")
        a("s_waitcnt lgkmcnt(0)")
        a("s_barrier")
        a(f"v_bfe_u32 v5, v{vLANE}, 4, 1")
        a("v_mul_u32_u24 v5, 80, v5")
        a(f"v_and_b32 v6, 15, v{vLANE}")
        a("v_add_u32 v5, v5, v6")
        a("v_lshlrev_b32 v5, 2, v5")
        a(f"v_add_u32 v5, {L_CSUM}, v5")
        for t in range(5): a(f"ds_read_b32 v{64+t}, v5 offset:{t*64}")
        a(f"v_cmp_gt_u32 vcc, 32, v{vLANE}")
        a("s_waitcnt lgkmcnt(0)")
        for t in range(5):
            b = 72 + 4 * t
            a(f"v_cndmask_b32 v{64+t}, 0, v{64+t}, vcc")
            a(f"v_cvt_pk_bf16_f32 v{b+1}, v{64+t}, 0")
            a(f"v_lshlrev_b32 v2, 16, v{b+1}")
            a(f"v_sub_f32 v2, v{64+t}, v2")
            a(f"v_cvt_pk_bf16_f32 v{b}, v{64+t}, v2")
            a(f"v_mov_b32 v{b+2}, 0"); a(f"v_mov_b32 v{b+3}, 0")
        for t in range(5):
            b = 72 + 4 * t
            a(f"v_mfma_f32_32x32x16_bf16 v[{ACC+16*t}:{ACC+16*t+15}], v[{b}:{b+3}], v[60:63], v[{ACC+16*t}:{ACC+16*t+15}]")

    def arrive(self, cnt_off_sgpr_expr):
        a = self.a
        lab = a.uniq("L_arr")
        a(f"s_cmp_eq_u32 s{sWAVE}, 0")
        a(f"s_cbranch_scc0 {lab}")
        a("v_mov_b32 v2, 1")
        a(f"v_mov_b32 v3, {OOB}")
        a(f"v_cmp_eq_u32 vcc, 0, v{vLANE}")
        a(f"v_cndmask_b32 v3, v3, v{vLANE}, vcc")
        a(f"buffer_atomic_add v2, v3, {srd(sWS)}, s{sT2} offen")
        a.label(lab)

    def poll(self, off_sgpr, target, a=None):
        a = a or self.a
        lab = a.uniq("L_poll"); done = a.uniq("L_polld")
        a(f"s_mov_b32 s{sT4}, 0")
        a("v_mov_b32 v3, 0")
        a.label(lab)
        a(f"buffer_load_dword v2, v3, {srd(sWS)}, s{off_sgpr} offen sc1")
        a("s_waitcnt vmcnt(0)")
        a(f"v_readfirstlane_b32 s{sT5}, v2")
        a("s_nop 3")
        a(f"s_cmp_ge_u32 s{sT5}, {target}")
        a(f"s_cbranch_scc1 {done}")
        a(f"s_add_u32 s{sT4}, s{sT4}, 1")
        a(f"s_cmp_gt_u32 s{sT4}, 300000")
        a(f"s_cbranch_scc1 {done}")
        a("s_sleep 2")
        a(f"s_branch {lab}")
        a.label(done)

    def epi_ffn(self):
        a = self.a
        a(f"v_mul_f32 v25, {f2u(-LOG2E):#x}, v24")
        a(f"v_lshlrev_b32 v26, 4, v{vLANE}")
        a(f"s_lshl_b32 s{sT2}, s{sRB}, 3")
        a(f"s_add_u32 s{sT2}, s{sT2}, s{sWAVE}")
        a(f"s_mul_i32 s{sT2}, s{sT2}, 136")
        a(f"s_add_u32 s{sT2}, s{sT2}, s{sB}")
        a(f"s_lshl_b32 s{sT2}, s{sT2}, 10")
        for t in range(5):
            A0 = ACC + 16 * t
            T = 60 + 12 * (t & 1)
            for r in range(8): a(f"v_mul_f32 v{T+r}, v{A0+r}, v25")
            for r in range(8): a(f"v_exp_f32 v{T+r}, v{T+r}")
            for r in range(8): a(f"v_fma_f32 v{T+r}, v{T+r}, v23, v23")
            for r in range(8): a(f"v_rcp_f32 v{T+r}, v{T+r}")
            for r in range(8): a(f"v_mul_f32 v{A0+r}, v{A0+r}, v{A0+8+r}")
            for r in range(8): a(f"v_mul_f32 v{A0+r}, v{A0+r}, v{T+r}")
            for d in range(4): a(f"v_cvt_pk_bf16_f32 v{T+8+d}, v{A0+2*d}, v{A0+2*d+1}")
            if t == 4:
                a(f"s_cmp_ge_u32 s{sJOB}, 16")
                a("s_cbranch_scc1 L_ffn_nost")
            a(f"buffer_store_dwordx4 v[{T+8}:{T+11}], v26, {srd(sWS)}, s{sT2} offen offset:{(t&3)*1024} sc1" if t < 4 else
              f"s_add_u32 s{sT2}, s{sT2}, 4096\nbuffer_store_dwordx4 v[{T+8}:{T+11}], v26, {srd(sWS)}, s{sT2} offen sc1")
        a.label("L_ffn_nost")
        a("s_waitcnt vmcnt(0)")
        a("s_barrier")
        a(f"s_lshl_b32 s{sT2}, s{sRB}, 8")
        a(f"s_add_u32 s{sT2}, s{sT2}, {CNT_OFF}")
        self.arrive(None)
        self.ts(3)

    def softmax10(self, D, E, PK, c1, T):
        a = self.a
        mx, mn, t0, t1, sp, sn = T, T+1, T+2, T+3, T+4, T+5
        a(f"v_max3_f32 v{mx}, v{D}, v{D+1}, v{D+2}")
        a(f"v_min3_f32 v{mn}, v{D}, v{D+1}, v{D+2}")
        for i in (3, 5, 7):
            a(f"v_max3_f32 v{mx}, v{mx}, v{D+i}, v{D+i+1}")
            a(f"v_min3_f32 v{mn}, v{mn}, v{D+i}, v{D+i+1}")
        a(f"v_max_f32 v{mx}, v{mx}, v{D+9}")
        a(f"v_min_f32 v{mn}, v{mn}, v{D+9}")
        a(f"v_mov_b32 v{t0}, v{mx}")
        a(f"v_mov_b32 v{t1}, v{mn}")
        a(f"v_permlane32_swap_b32 v{mx}, v{t0}")
        a(f"v_permlane32_swap_b32 v{mn}, v{t1}")
        a(f"v_max_f32 v{mx}, v{mx}, v{t0}")
        a(f"v_min_f32 v{mn}, v{mn}, v{t1}")
        a(f"v_mul_f32 v{mx}, v{mx}, v{c1}")
        a(f"v_mul_f32 v{mn}, v{mn}, v{c1}")
        for i in range(10):
            a(f"v_fma_f32 v{E+i}, v{D+i}, v{c1}, -v{mx}")
            a(f"v_fma_f32 v{E+10+i}, -v{D+i}, v{c1}, v{mn}")
        for i in range(20): a(f"v_exp_f32 v{E+i}, v{E+i}")
        a(f"v_add_f32 v{sp}, v{E}, v{E+1}")
        a(f"v_add_f32 v{sn}, v{E+10}, v{E+11}")
        for i in range(2, 10):
            a(f"v_add_f32 v{sp}, v{sp}, v{E+i}")
            a(f"v_add_f32 v{sn}, v{sn}, v{E+10+i}")
        a(f"v_mov_b32 v{t0}, v{sp}")
        a(f"v_mov_b32 v{t1}, v{sn}")
        a(f"v_permlane32_swap_b32 v{sp}, v{t0}")
        a(f"v_permlane32_swap_b32 v{sn}, v{t1}")
        a(f"v_add_f32 v{sp}, v{sp}, v{t0}")
        a(f"v_add_f32 v{sn}, v{sn}, v{t1}")
        a(f"v_rcp_f32 v{sp}, v{sp}")
        a(f"v_rcp_f32 v{sn}, v{sn}")
        for i in range(10):
            a(f"v_mul_f32 v{E+i}, v{E+i}, v{sp}")
            a(f"v_mul_f32 v{E+10+i}, v{E+10+i}, v{sn}")
        for i in range(10):
            a(f"v_cvt_pk_bf16_f32 v{PK+i}, v{E+2*i}, v{E+2*i+1}")

    def cvtP(self, P, half):
        a = self.a
        for t in range(5):
            for i in range(2):
                G_ = 2 * t + i
                r = ACC + 16 * t + 8 * half + 4 * i
                a(f"v_cvt_pk_bf16_f32 v{P+2*G_}, v{r}, v{r+1}")
                a(f"v_cvt_pk_bf16_f32 v{P+2*G_+1}, v{r+2}, v{r+3}")
        a(f"v_mov_b32 v{P+20}, 0"); a(f"v_mov_b32 v{P+21}, 0")

    def feat_mfma(self, D, P, p, idx0, AF):
        a = self.a
        G0 = [0, 2, 5, 7][p]
        for s_ in range(2):
            idx = idx0 + s_
            a(f"ds_read_b128 v[{AF+4*s_}:{AF+4*s_+3}], v30 offset:{(idx & 7)*4096 + (idx >> 3)*1024}")
        a("s_waitcnt lgkmcnt(0)")
        a(f"v_mfma_f32_32x32x16_bf16 v[{D}:{D+15}], v[{AF}:{AF+3}], v[{P+2*G0}:{P+2*G0+3}], 0")
        a(f"v_mfma_f32_32x32x16_bf16 v[{D}:{D+15}], v[{AF+4}:{AF+7}], v[{P+2*G0+4}:{P+2*G0+7}], v[{D}:{D+15}]")

    def epi_kv(self):
        a = self.a
        P = 60
        D = [104, 120]
        E = 136
        PK = 84
        T = 156
        a(f"v_mul_f32 v25, {f2u(LOG2E):#x}, v24")
        a(f"v_lshlrev_b32 v30, 4, v{vLANE}")
        a(f"v_and_b32 v5, 31, v{vLANE}")
        a(f"s_lshl_b32 s{sT2}, s{sWAVE}, 5")
        a(f"v_add_u32 v5, s{sT2}, v5")
        a(f"v_lshrrev_b32 v6, 5, v{vLANE}")
        a(f"v_mul_u32_u24 v27, {PHI_ROW}, v5")
        a("v_mul_u32_u24 v7, 40, v6")
        a("v_add_u32 v27, v27, v7")
        a(f"v_add_u32 v27, {L_PHI}, v27")
        a(f"v_mul_u32_u24 v28, {V_ROW}, v5")
        a("v_lshl_add_u32 v28, v6, 3, v28")
        a(f"v_add_u32 v28, {L_V}, v28")
        self.cvtP(P, 0)
        self.feat_mfma(D[0], P, 0, 0, 40)
        for t in range(5):
            for i in range(2):
                G_ = 2 * t + i
                r = ACC + 16 * t + 8 + 4 * i
                for e in range(4): a(f"v_mul_f32 v{r+e}, v{r+e}, v24")
                a(f"v_cvt_pk_bf16_f32 v{96+2*(G_&1)}, v{r}, v{r+1}")
                a(f"v_cvt_pk_bf16_f32 v{97+2*(G_&1)}, v{r+2}, v{r+3}")
                a(f"ds_write_b64 v28, v[{96+2*(G_&1)}:{97+2*(G_&1)}] offset:{16*G_}")
        a("v_mov_b32 v100, 0x3f80"); a("v_mov_b32 v101, 0")
        a(f"v_lshlrev_b32 v7, 3, v6")
        a("v_sub_u32 v7, v28, v7")
        a("ds_write_b64 v7, v[100:101] offset:160")
        for p in range(4):
            if p < 3: self.feat_mfma(D[(p + 1) & 1], P, p + 1, 2 * (p + 1), 40 + 8 * ((p + 1) & 1))
            self.softmax10(D[p & 1], E, PK, 25, T)
            for i in range(5):
                a(f"ds_write_b64 v27, v[{PK+2*i}:{PK+2*i+1}] offset:{p*80 + i*8}")
        a("s_waitcnt lgkmcnt(0)")
        a("s_barrier")
        self.ts(3)
        a(f"s_lshr_b32 s{sT2}, s{sWAVE}, 1")
        a(f"s_and_b32 s{sT3}, s{sWAVE}, 1")
        a(f"v_lshrrev_b32 v5, 4, v{vLANE}")
        a("v_and_b32 v6, 1, v5")
        a("v_lshrrev_b32 v5, 1, v5")
        a(f"v_bfe_u32 v7, v{vLANE}, 2, 2")
        a("v_lshl_add_u32 v5, v5, 3, v7")
        a(f"v_and_b32 v7, 3, v{vLANE}")
        a(f"s_mul_i32 s{sT4}, s{sT2}, 40")
        a("v_lshlrev_b32 v8, 3, v7")
        a(f"v_add_u32 v8, s{sT4}, v8")
        a(f"s_add_u32 s{sT5}, s{sT4}, 32")
        a(f"v_mov_b32 v9, s{sT5}")
        a("v_cmp_eq_u32 vcc, 0, v7")
        a("v_mov_b32 v2, 160")
        a("v_cndmask_b32 v9, v2, v9, vcc")
        a("v_cmp_eq_u32 vcc, 0, v6")
        a("v_cndmask_b32 v8, v9, v8, vcc")
        a(f"v_mul_u32_u24 v9, {V_ROW}, v5")
        a("v_add_u32 v8, v8, v9")
        a(f"v_add_u32 v32, {L_V}, v8")
        a(f"s_lshl_b32 s{sT5}, s{sT3}, 3")
        a("v_lshl_add_u32 v8, v6, 2, v7")
        a(f"v_add_u32 v8, s{sT5}, v8")
        a("v_min_u32 v8, 9, v8")
        a("v_lshlrev_b32 v8, 3, v8")
        a(f"s_mul_i32 s{sT4}, s{sT2}, 80")
        a(f"v_add_u32 v8, s{sT4}, v8")
        a(f"v_mul_u32_u24 v9, {PHI_ROW}, v5")
        a("v_add_u32 v8, v8, v9")
        a(f"v_add_u32 v33, {L_PHI}, v8")
        a(f"v_add_u32 v34, {8*16*PHI_ROW}, v33")
        KD = 104
        def rd(s_, buf):
            r = 60 + 8 * buf
            a(f"ds_read_b64_tr_b16 v[{r}:{r+1}], v32 offset:{s_*16*V_ROW}")
            a(f"ds_read_b64_tr_b16 v[{r+2}:{r+3}], v32 offset:{s_*16*V_ROW + 4*V_ROW}")
            bb, so = (33, s_) if s_ < 8 else (34, s_ - 8)
            a(f"ds_read_b64_tr_b16 v[{r+4}:{r+5}], v{bb} offset:{so*16*PHI_ROW}")
            a(f"ds_read_b64_tr_b16 v[{r+6}:{r+7}], v{bb} offset:{so*16*PHI_ROW + 4*PHI_ROW}")
        rd(0, 0); rd(1, 1); rd(2, 2)
        for s_ in range(16):
            buf = s_ % 3
            r = 60 + 8 * buf
            n = 4 * min(2, 15 - s_)
            a(f"s_waitcnt lgkmcnt({n})")
            c = "0" if s_ == 0 else f"v[{KD}:{KD+15}]"
            a(f"v_mfma_f32_32x32x16_bf16 v[{KD}:{KD+15}], v[{r}:{r+3}], v[{r+4}:{r+7}], {c}")
            if s_ + 3 < 16: rd(s_ + 3, buf)
        a(f"v_and_b32 v5, 31, v{vLANE}")
        a(f"s_lshl_b32 s{sT5}, s{sT3}, 5")
        a(f"v_add_u32 v5, s{sT5}, v5")
        a(f"v_lshrrev_b32 v6, 5, v{vLANE}")
        a("v_mul_u32_u24 v7, 160, v6")
        a("v_add_u32 v7, v7, v5")
        a("v_lshlrev_b32 v7, 2, v7")
        a(f"v_mov_b32 v8, {OOB}")
        a("v_cmp_gt_u32 vcc, 40, v5")
        a("v_cndmask_b32 v7, v8, v7, vcc")
        a("v_cmp_eq_u32 vcc, 0, v6")
        a("v_cndmask_b32 v9, v8, v7, vcc")
        a(f"s_lshl_b32 s{sT4}, s{sJOB}, 2")
        a(f"s_add_u32 s{sT4}, s{sT4}, s{sT2}")
        a(f"s_lshl_b32 s{sT4}, s{sT4}, 12")
        a(f"s_add_u32 s{sT4}, s{sT4}, {KV_OFF}")
        for r in range(12):
            off = (8 * (r >> 2) + (r & 3)) * 160
            v = 7 if r <= 8 else 9
            a(f"buffer_atomic_add_f32 v{KD+r}, v{v}, {srd(sWS)}, s{sT4} offen offset:{off}")
        a("s_waitcnt vmcnt(0)")
        a("s_barrier")
        a(f"s_lshl_b32 s{sT2}, s{sJOB}, 8")
        a(f"s_add_u32 s{sT2}, s{sT2}, {CNT_OFF + 16*256}")
        self.arrive(None)
        self.ts(4)

    def epi_q(self):
        a = self.a
        P0, P1 = 60, 82
        D = [104, 120]
        E = 136
        T = 26
        T = 32
        PH = 160
        a(f"v_mul_f32 v25, {f2u(LOG2E):#x}, v24")
        a(f"v_lshlrev_b32 v30, 4, v{vLANE}")
        self.cvtP(P0, 0)
        self.cvtP(P1, 1)
        self.feat_mfma(D[0], P0, 0, 0, 40)
        for h in range(8):
            if h < 7:
                hn = h + 1
                self.feat_mfma(D[hn & 1], P0 if hn < 4 else P1, hn & 3, (hn >> 2) * 8 + 2 * (hn & 3), 40 + 8 * (hn & 1))
            self.softmax10(D[h & 1], E, PH + 12 * h, 25, T)
            a(f"v_mov_b32 v{PH+12*h+10}, 0"); a(f"v_mov_b32 v{PH+12*h+11}, 0")
        self.ts(3)
        a(f"s_cmp_eq_u32 s{sWAVE}, 0")
        a("s_cbranch_scc0 L_q_nopoll")
        a(f"s_lshl_b32 s{sT2}, s{sJOB}, 9")
        a(f"s_add_u32 s{sT2}, s{sT2}, {CNT_OFF + 16*256}")
        self.poll(sT2, 8)
        a(f"s_add_u32 s{sT2}, s{sT2}, 256")
        self.poll(sT2, 8)
        a.label("L_q_nopoll")
        a("s_barrier")
        self.ts(4)
        a(f"v_bfe_u32 v2, v{vLANE}, 3, 2")
        a(f"v_and_b32 v3, 3, v{vLANE}")
        a("v_lshl_add_u32 v2, v2, 2, v3")
        a(f"v_bfe_u32 v3, v{vLANE}, 2, 1")
        a("v_lshl_add_u32 v3, v2, 1, v3")
        a("v_cmp_eq_u32 vcc, 10, v2")
        a("v_mov_b32 v4, 20")
        a("v_cndmask_b32 v3, v3, v4, vcc")
        a("v_mul_u32_u24 v3, 160, v3")
        a(f"v_lshrrev_b32 v4, 5, v{vLANE}")
        a("v_mul_u32_u24 v4, 80, v4")
        a("v_add_u32 v3, v3, v4")
        a(f"v_mov_b32 v4, {OOB}")
        a("v_cmp_gt_u32 vcc, 11, v2")
        a("v_cndmask_b32 v3, v4, v3, vcc")
        a(f"s_lshl_b32 s{sT4}, s{sJOB}, 3")
        a(f"s_add_u32 s{sT4}, s{sT4}, s{sWAVE}")
        a(f"s_lshl_b32 s{sT4}, s{sT4}, 12")
        a(f"s_add_u32 s{sT4}, s{sT4}, {KV_OFF}")
        for s_ in range(3):
            a(f"buffer_load_dwordx4 v[{104+8*s_}:{107+8*s_}], v3, {srd(sWS)}, s{sT4} offen offset:{32*s_} sc1")
            a(f"buffer_load_dwordx4 v[{108+8*s_}:{111+8*s_}], v3, {srd(sWS)}, s{sT4} offen offset:{32*s_+16} sc1")
        a(f"s_mul_i32 s{sT5}, s{sWAVE}, 3072")
        a(f"v_add_u32 v5, s{sT5}, v30")
        a(f"v_add_u32 v5, {L_KVA}, v5")
        a("s_waitcnt vmcnt(0)")
        for s_ in range(3):
            for d in range(4):
                a(f"v_cvt_pk_bf16_f32 v{136+4*s_+d}, v{104+8*s_+2*d}, v{105+8*s_+2*d}")
            a(f"ds_write_b128 v5, v[{136+4*s_}:{139+4*s_}] offset:{s_*1024}")
        a("s_waitcnt lgkmcnt(0)")
        a("s_barrier")
        a(f"v_add_u32 v5, {L_KVA}, v30")
        OF = 60
        def rdA(h):
            b = 40 + 12 * (h & 1) if False else (104 + 12 * (h & 1))
            for s_ in range(3): a(f"ds_read_b128 v[{b+4*s_}:{b+4*s_+3}], v5 offset:{(h*3+s_)*1024}")
        OD = [128, 144]
        rdA(0)
        for h in range(8):
            if h < 7: rdA(h + 1)
            b = 104 + 12 * (h & 1)
            a(f"s_waitcnt lgkmcnt({3 if h < 7 else 0})")
            d = OD[h & 1]
            for s_ in range(3):
                c = "0" if s_ == 0 else f"v[{d}:{d+15}]"
                a(f"v_mfma_f32_32x32x16_bf16 v[{d}:{d+15}], v[{b+4*s_}:{b+4*s_+3}], v[{PH+12*h+4*s_}:{PH+12*h+4*s_+3}], {c}")
            if h >= 1: self.o_finish(OD[(h - 1) & 1], OF + 5 * (h - 1))
        self.o_finish(OD[7 & 1], OF + 35)
        a(f"s_lshl_b32 s{sT2}, s{sRB}, 3")
        a(f"s_add_u32 s{sT2}, s{sT2}, s{sWAVE}")
        a(f"s_mul_i32 s{sT2}, s{sT2}, 136")
        a(f"s_mul_i32 s{sT3}, s{sJOB}, 10")
        a(f"s_add_u32 s{sT2}, s{sT2}, s{sT3}")
        a(f"s_add_u32 s{sT2}, s{sT2}, 96")
        a(f"s_lshl_b32 s{sT2}, s{sT2}, 10")
        for f in range(10):
            if f and f % 4 == 0: a(f"s_add_u32 s{sT2}, s{sT2}, 4096")
            a(f"buffer_store_dwordx4 v[{OF+4*f}:{OF+4*f+3}], v30, {srd(sWS)}, s{sT2} offen offset:{(f&3)*1024} sc1")
        a("s_waitcnt vmcnt(0)")
        a("s_barrier")
        a(f"s_lshl_b32 s{sT2}, s{sRB}, 8")
        a(f"s_add_u32 s{sT2}, s{sT2}, {CNT_OFF + 8*256}")
        self.arrive(None)
        self.ts(5)

    def o_finish(self, d, dst):
        a = self.a
        a(f"v_add_f32 v38, {f2u(1e-6):#x}, v{d+10}")
        a("v_rcp_f32 v38, v38")
        for i in range(10): a(f"v_mul_f32 v{d+i}, v{d+i}, v38")
        for i in range(5): a(f"v_cvt_pk_bf16_f32 v{dst+i}, v{d+2*i}, v{d+2*i+1}")

    def p2_setup(self):
        a = self.a
        a(f"s_lshr_b32 s{sT2}, s2, 3")
        a(f"s_sub_u32 s{sT3}, s{sT2}, 4")
        a(f"s_cmp_lt_u32 s{sT2}, 8")
        a(f"s_cselect_b32 s{sT3}, s{sT2}, s{sT3}")
        a(f"s_and_b32 s{sT5}, s{sXCD}, 1")
        a(f"s_sub_u32 s{sT4}, 28, s{sT5}")
        a(f"s_cmp_ge_u32 s{sT3}, s{sT4}")
        a("s_cbranch_scc1 L_end")
        a(f"s_lshr_b32 s{sT4}, s{sXCD}, 1")
        a(f"s_mul_i32 s{sT4}, s{sT4}, 55")
        a(f"s_mul_i32 s{sTAU}, s{sT5}, 28")
        a(f"s_add_u32 s{sTAU}, s{sTAU}, s{sT4}")
        a(f"s_add_u32 s{sTAU}, s{sTAU}, s{sT3}")
        a(f"s_mul_i32 s{sA}, s{sTAU}, 6554")
        a(f"s_lshr_b32 s{sA}, s{sA}, 16")
        a(f"s_mul_i32 s{sT2}, s{sA}, 10")
        a(f"s_sub_u32 s{sB}, s{sTAU}, s{sT2}")
        self.build_srd(sT0, PWD, 1966080)
        self.build_srd(sT1, PWO, 819200)
        a(f"v_lshrrev_b32 v2, 3, v{vLANE}")
        a(f"v_and_b32 v3, 7, v{vLANE}")
        a("v_bfe_u32 v4, v2, 1, 1")
        a("v_lshlrev_b32 v4, 2, v4")
        a("v_xor_b32 v3, v3, v4")
        a("v_lshlrev_b32 v3, 4, v3")
        a("v_lshrrev_b32 v4, 2, v2")
        a("v_lshlrev_b32 v4, 3, v4")
        a("v_and_b32 v5, 3, v2")
        a("v_add_u32 v4, v4, v5")
        a("v_mul_u32_u24 v4, 1280, v4")
        a("v_add_u32 v16, v4, v3")
        a(f"v_add_u32 v17, {4*1280}, v16")
        a("v_mul_u32_u24 v4, 2560, v2")
        a("v_add_u32 v18, v4, v3")
        a("v_add_u32 v19, 1280, v18")

    def p2_dma(self, stage, kh_s, q_s_or_int, vsel):
        pass

    def p2_prefetch(self, s0, s1):
        a = self.a
        a(f"s_and_b32 s{sT2}, s{sWAVE}, 1")
        a(f"s_cmp_eq_u32 s{sT2}, 0")
        a("s_cselect_b64 vcc, -1, 0")
        a("v_cndmask_b32 v20, v17, v16, vcc")
        a(f"s_lshr_b32 s{sT3}, s{sWAVE}, 1")
        a(f"s_mul_i32 s{sT3}, s{sT3}, {16*1280}")
        a(f"s_lshl_b32 s{sT4}, s{sB}, 7")
        a(f"s_add_u32 s{sT3}, s{sT3}, s{sT4}")
        a(f"s_lshl_b32 s{sT4}, s{sWAVE}, 10")
        for st in range(s0, s1):
            for kh in range(2):
                row0 = (48 * kh + 4 * st) * 16
                a(f"s_add_u32 m0, s{sT4}, {(st % 10) * 16384 + kh * 8192}")
                a(f"s_add_u32 s{sT5}, s{sT3}, {row0 * 1280}")
                a(f"buffer_load_dwordx4 v20, {srd(sT0)}, s{sT5} offen lds")

    def p2_main(self):
        a = self.a
        self.ts(6)
        a(f"s_mul_i32 s{sT2}, s{sA}, 96")
        a(f"s_lshr_b32 s{sC}, s{sT2}, 8")
        a(f"s_add_u32 s{sT2}, s{sT2}, 95")
        a(f"s_min_u32 s{sT2}, s{sT2}, 2047")
        a(f"s_lshr_b32 s{sD}, s{sT2}, 8")
        a(f"s_cmp_eq_u32 s{sWAVE}, 0")
        a("s_cbranch_scc0 L_p2_nopoll")
        a(f"s_lshl_b32 s{sT2}, s{sC}, 8")
        a(f"s_add_u32 s{sT2}, s{sT2}, {CNT_OFF}")
        self.poll(sT2, 20)
        a(f"s_lshl_b32 s{sT2}, s{sD}, 8")
        a(f"s_add_u32 s{sT2}, s{sT2}, {CNT_OFF}")
        self.poll(sT2, 20)
        a.label("L_p2_nopoll")
        a("s_waitcnt vmcnt(0)")
        a("s_barrier")
        self.ts(7)
        a(f"s_cmp_ge_u32 s{sWAVE}, 6")
        a("s_cbranch_scc1 L_p2_loader")
        HB, WB, PA, XR = 64, 96, 112, 144
        vA0, vA1, vL16 = 10, 11, 12
        a(f"s_cmp_ge_u32 s{sWAVE}, 3")
        a(f"s_cselect_b32 s{sT2}, 1, 0")
        a(f"s_mul_i32 s{sT3}, s{sT2}, 3")
        a(f"s_sub_u32 s{sT3}, s{sWAVE}, s{sT3}")
        a(f"s_mov_b32 s{sJG}, s{sT2}")
        a(f"s_mov_b32 s{sSLOT}, s{sT3}")
        a(f"s_mul_i32 s{sT4}, s{sA}, 3")
        a(f"s_add_u32 s{sT4}, s{sT4}, s{sT3}")
        a(f"s_mov_b32 s{sJIDX}, s{sT4}")
        self.build_srd(sX, PWS, HO_SIZE)
        self.build_srd(sW, PX, 2621440)
        a(f"s_mul_i32 s{sT5}, s{sT4}, 136")
        a(f"s_mul_i32 s{sXOFF}, s{sT2}, 48")
        a(f"s_add_u32 s{sXOFF}, s{sXOFF}, s{sT5}")
        a(f"s_lshl_b32 s{sXOFF}, s{sXOFF}, 10")
        a(f"s_mul_i32 s{sWOFF}, s{sT2}, 20")
        a(f"s_add_u32 s{sWOFF}, s{sWOFF}, s{sT5}")
        a(f"s_add_u32 s{sWOFF}, s{sWOFF}, 96")
        a(f"s_lshl_b32 s{sWOFF}, s{sWOFF}, 10")
        a(f"v_lshlrev_b32 v{vL16}, 4, v{vLANE}")
        a(f"v_and_b32 v2, 31, v{vLANE}")
        a("v_mul_u32_u24 v2, 1280, v2")
        a(f"v_lshrrev_b32 v3, 5, v{vLANE}")
        a("v_lshl_add_u32 v13, v3, 3, v2")
        a(f"s_mul_i32 s{sT5}, s{sT4}, {32*1280}")
        a(f"s_lshl_b32 s{sTMP}, s{sB}, 7")
        a(f"s_add_u32 s{sT5}, s{sT5}, s{sTMP}")
        a(f"s_lshl_b32 s{sTMP}, s{sT2}, 6")
        a(f"s_add_u32 s{sWCH}, s{sT5}, s{sTMP}")
        for q in range(4):
            a(f"buffer_load_dwordx2 v[{XR+2*q}:{XR+2*q+1}], v13, {srd(sW)}, s{sWCH} offen offset:{q*16}")
        def hload(n):
            if n >= 68: return
            if n < 48: base, k = sXOFF, n
            else: base, k = sWOFF, n - 48
            if k and k % 4 == 0: a(f"s_add_u32 s{base}, s{base}, 4096")
            b = HB + 4 * (n & 7)
            a(f"buffer_load_dwordx4 v[{b}:{b+3}], v{vL16}, {srd(sX)}, s{base} offen offset:{(k&3)*1024} sc1")
        for n in range(8): hload(n)
        a(f"v_lshrrev_b32 v2, 5, v{vLANE}")
        a(f"v_bfe_u32 v3, v{vLANE}, 2, 2")
        a("v_lshl_add_u32 v2, v2, 3, v3")
        a("v_lshlrev_b32 v2, 7, v2")
        a(f"v_bfe_u32 v4, v{vLANE}, 4, 1")
        a("v_lshlrev_b32 v4, 1, v4")
        a(f"v_bfe_u32 v5, v{vLANE}, 1, 1")
        a("v_add_u32 v4, v4, v5")
        a("v_bfe_u32 v5, v3, 1, 1")
        a("v_lshlrev_b32 v5, 2, v5")
        a("v_xor_b32 v4, v4, v5")
        a("v_lshl_add_u32 v2, v4, 4, v2")
        a(f"v_and_b32 v5, 1, v{vLANE}")
        a("v_lshl_add_u32 v2, v5, 3, v2")
        a(f"s_lshl_b32 s{sTMP}, s{sT2}, 13")
        a(f"v_add_u32 v{vA0}, s{sTMP}, v2")
        a(f"v_xor_b32 v{vA1}, 64, v{vA0}")
        for i in range(32): a(f"v_mov_b32 v{PA+i}, 0")
        cur = {"slot": 0}
        def wread(n):
            if n >= 68: return
            st = n >> 2
            slot = st % 10
            if slot != cur["slot"]:
                d = (slot - cur["slot"]) * 16384
                a(f"v_add_u32 v{vA0}, {d & 0xffffffff:#x}, v{vA0}")
                a(f"v_add_u32 v{vA1}, {d & 0xffffffff:#x}, v{vA1}")
                cur["slot"] = slot
            for nt in range(2):
                b = WB + 8 * (n & 1) + 4 * nt
                va = vA0 if nt == 0 else vA1
                a(f"ds_read_b64_tr_b16 v[{b}:{b+1}], v{va} offset:{(n&3)*2048}")
                a(f"ds_read_b64_tr_b16 v[{b+2}:{b+3}], v{va} offset:{(n&3)*2048 + 512}")
        wread(0); wread(1)
        for n in range(68):
            if n and n % 8 == 0 and n <= 56:
                a("s_barrier")
            nv = min(7, 67 - n)
            nl = 4 if n < 67 else 0
            a(f"s_waitcnt vmcnt({nv}) lgkmcnt({nl})")
            hb = HB + 4 * (n & 7)
            for nt in range(2):
                b = WB + 8 * (n & 1) + 4 * nt
                a(f"v_mfma_f32_32x32x16_bf16 v[{PA+16*nt}:{PA+16*nt+15}], v[{b}:{b+3}], v[{hb}:{hb+3}], v[{PA+16*nt}:{PA+16*nt+15}]")
            hload(n + 8)
            wread(n + 2)
        self.ts(8)
        a("s_barrier")
        a(f"s_lshl_b32 s{sT2}, s{sSLOT}, 1")
        a(f"s_add_u32 s{sT2}, s{sT2}, s{sJG}")
        a(f"s_lshl_b32 s{sT3}, s{sT2}, 12")
        a(f"s_xor_b32 s{sT4}, s{sT3}, 4096")
        a(f"v_add_u32 v2, s{sT3}, v{vL16}")
        a(f"v_add_u32 v3, s{sT4}, v{vL16}")
        a(f"s_cmp_eq_u32 s{sJG}, 0")
        a("s_cbranch_scc0 L_p2_kh1")
        for variant in range(2):
            keep, send = (PA, PA + 16) if variant == 0 else (PA + 16, PA)
            if variant == 1: a.label("L_p2_kh1")
            for q in range(4): a(f"ds_write_b128 v2, v[{send+4*q}:{send+4*q+3}] offset:{q*1024}")
            if variant == 1:
                for i in range(16): a(f"v_mov_b32 v{PA+i}, v{PA+16+i}")
            else:
                a("s_branch L_p2_x")
        a.label("L_p2_x")
        a("s_waitcnt lgkmcnt(0)")
        a("s_barrier")
        for q in range(4): a(f"ds_read_b128 v[{PA+16+4*q}:{PA+16+4*q+3}], v3 offset:{q*1024}")
        a("s_waitcnt lgkmcnt(0)")
        for i in range(16): a(f"v_add_f32 v{PA+i}, v{PA+i}, v{PA+16+i}")
        for q in range(4):
            for h2 in range(2):
                x = XR + 2 * q + h2
                a(f"v_lshlrev_b32 v2, 16, v{x}")
                a(f"v_and_b32 v3, 0xffff0000, v{x}")
                a(f"v_add_f32 v{PA+4*q+2*h2}, v{PA+4*q+2*h2}, v2")
                a(f"v_add_f32 v{PA+4*q+2*h2+1}, v{PA+4*q+2*h2+1}, v3")
        O = 64
        for q in range(4):
            a(f"v_cvt_pk_bf16_f32 v{O+2*q}, v{PA+4*q}, v{PA+4*q+1}")
            a(f"v_cvt_pk_bf16_f32 v{O+2*q+1}, v{PA+4*q+2}, v{PA+4*q+3}")
        for pr in range(2):
            a(f"v_permlane32_swap_b32 v{O+4*pr}, v{O+4*pr+2}")
            a(f"v_permlane32_swap_b32 v{O+4*pr+1}, v{O+4*pr+3}")
        self.build_srd(sT0, POUT, 2621440)
        a(f"v_and_b32 v2, 31, v{vLANE}")
        a("v_mul_u32_u24 v2, 1280, v2")
        a(f"v_lshrrev_b32 v3, 5, v{vLANE}")
        a("v_lshl_add_u32 v2, v3, 4, v2")
        for pr in range(2):
            a(f"buffer_store_dwordx4 v[{O+4*pr}:{O+4*pr+3}], v2, {srd(sT0)}, s{sWCH} offen offset:{pr*32}")
        self.ts(9)
        a("s_branch L_end")
        a.label("L_p2_loader")
        a(f"s_sub_u32 s{sT2}, s{sWAVE}, 6")
        a(f"s_lshl_b32 s{sXDST}, s{sT2}, 13")
        a(f"s_lshl_b32 s{sXOFF}, s{sB}, 7")
        a(f"s_mul_i32 s{sT3}, s{sT2}, {48*16*1280}")
        a(f"s_add_u32 s{sWOFF}, s{sXOFF}, s{sT3}")
        a(f"s_mul_i32 s{sT3}, s{sT2}, {20*16*1280}")
        a(f"s_add_u32 s{sWDST}, s{sXOFF}, s{sT3}")
        def refill(st):
            for q in range(8):
                a(f"s_add_u32 m0, s{sXDST}, {(st % 10)*16384 + q*1024}")
                if st < 12:
                    a(f"s_add_u32 s{sT5}, s{sWOFF}, {(4*st + (q>>1))*16*1280}")
                    a(f"buffer_load_dwordx4 v{16+(q&1)}, {srd(sT0)}, s{sT5} offen lds")
                else:
                    a(f"s_add_u32 s{sT5}, s{sWDST}, {(4*(st-12) + (q>>1))*16*1280}")
                    a(f"buffer_load_dwordx4 v{18+(q&1)}, {srd(sT1)}, s{sT5} offen lds")
        a("s_barrier"); refill(10); refill(11)
        a("s_barrier"); refill(12); refill(13)
        a("s_barrier"); refill(14); refill(15)
        a("s_waitcnt vmcnt(32)")
        a("s_barrier"); refill(16)
        a(f"s_cmp_eq_u32 s{sWAVE}, 6")
        a("s_cbranch_scc0 L_p2_nopo")
        a(f"s_lshl_b32 s{sT2}, s{sC}, 8")
        a(f"s_add_u32 s{sT2}, s{sT2}, {CNT_OFF + 8*256}")
        self.poll(sT2, 4)
        a(f"s_lshl_b32 s{sT2}, s{sD}, 8")
        a(f"s_add_u32 s{sT2}, s{sT2}, {CNT_OFF + 8*256}")
        self.poll(sT2, 4)
        a.label("L_p2_nopo")
        a("s_waitcnt vmcnt(0)")
        a("s_barrier")
        a("s_barrier")
        a("s_barrier")
        a("s_barrier")
        a("s_barrier")
        a("s_branch L_end")

    def gen(self):
        a = self.a
        self.prologue()
        self.mainloop()
        self.epi_common()
        a(f"s_cmp_eq_u32 s{sTYPE}, 2")
        a("s_cbranch_scc1 L_ffn")
        a(f"s_cmp_eq_u32 s{sTYPE}, 1")
        a("s_cbranch_scc1 L_q")
        self.epi_kv()
        a("s_branch L_p2")
        a.label("L_q")
        self.epi_q()
        a("s_branch L_end")
        a.label("L_ffn")
        self.epi_ffn()
        a.label("L_p2")
        if self.o.get("nop2"):
            a("s_branch L_end")
        self.p2_setup()
        self.p2_prefetch(0, 10)
        self.p2_main()
        lines = a.l + ["s_branch L_end"] + self.ool.l + ["L_end:", "s_endpgm"]
        lines, added = pad_hazards(lines)
        body = "\n".join(("    " + l if not l.endswith(":") else l) for l in lines)
        hdr = open("cdna_kernels/" + KNAME[:-7] + ".s.ref").read().split("; Override launch geometry")[0]
        txt = hdr + f"""; Generated fused kernel: LN + QKV/FFN GEMM + hedgehog linear attention + output GEMM, one persistent launch.
; @launch grid=(256,1,1) block=(512,1,1) lds={LDS_TOTAL}
.amdgcn_target "amdgcn-amd-amdhsa--gfx950"
.text
.globl {KNAME}
.p2align 8
.type {KNAME},@function
{KNAME}:
{body}
.section .rodata,"a"
.p2align 6
.amdhsa_kernel {KNAME}
  .amdhsa_next_free_vgpr 256
  .amdhsa_next_free_sgpr 102
  .amdhsa_accum_offset 256
  .amdhsa_group_segment_fixed_size 0
  .amdhsa_kernarg_size 88
  .amdhsa_user_sgpr_count 2
  .amdhsa_user_sgpr_kernarg_segment_ptr 1
  .amdhsa_system_sgpr_workgroup_id_x 1
.end_amdhsa_kernel
"""
        return txt, added

if __name__ == "__main__":
    import argparse
    ap = argparse.ArgumentParser()
    ap.add_argument("-o", default="k.s")
    ap.add_argument("--dev", action="store_true")
    ap.add_argument("--ts", action="store_true")
    ap.add_argument("--nop2", action="store_true")
    args = ap.parse_args()
    g = G(dict(dev=args.dev or args.ts, ts=args.ts, nop2=args.nop2))
    txt, added = g.gen()
    open(args.o, "w").write(txt)
    print("written", args.o, "lines", txt.count("\n"), "hazard pad states", added)
```

```python
import sys, struct
sys.path.insert(0, "dev")
from asmlib import Asm, pad_hazards

KNAME = "parallel_sum__linear_kernel_hedgehog__swiglu_ffn__prompt_kernel"

HO_TT = 136 * 1024
HO_SIZE = 64 * HO_TT
KV_OFF = HO_SIZE
KV_SIZE = 32 * 4096
ST_OFF = KV_OFF + KV_SIZE
ST_SIZE = 2048 * 8
CNT_OFF = ST_OFF + ST_SIZE
CSP_OFF = CNT_OFF + 24 * 256
CSP_SIZE = 32 * 8 * 640
WS_SIZE = CSP_OFF + CSP_SIZE
DBG_OFF = WS_SIZE
DBG_SIZE = 256 * 8 * 64 + 4096
OOB = 0x40000000
LOG2E = 1.4426950408889634

XST = 32768
WARR = 10240
WA1 = WARR + 128
WST = 2 * WARR + 128
WBASE = 3 * XST
L_ZERO = WBASE + 3 * WST
L_ONES = L_ZERO + 16
L_CSP = L_ZERO + 128
L_DUMMY = L_CSP + 2560
LDS_TOTAL = 163840
assert L_DUMMY + 1024 == LDS_TOTAL
L_WPHI = 122880
L_PHI = 0
PHI_ROW = 320
L_V = 81920
V_ROW = 160
L_KVA = 0

PX, PQKV, PPHI, PWO, PBX, PWG, PWU, PWD, POUT, PDBG, PWS = 4, 6, 8, 10, 12, 14, 16, 18, 20, 22, 24
sX, sW, sWS, sDBG, sT0, sT1 = 28, 32, 36, 40, 44, 48
sWAVE, sRB, sTYPE, sJOB, sJIDX, sC = 52, 53, 54, 55, 56, 57
sXOFF, sXDST, sTMP, sWOFF, sWDST = 58, 59, 60, 61, 62
sSTRIDE, sWSTp, sWSTm, sXSTp, sXSTm, sMASK = 63, 64, 65, 66, 67, 68
sWEND, sXEND, sWBEG, sXBEG, sRST, sDW, sDX, sWCH = 69, 70, 71, 72, 73, 74, 75, 76
sW3F, sT2, sT3, sT4, sT5, sOOB, sSPEC = 77, 78, 79, 80, 81, 82, 83
sKH, sTT, sXCD, sTTG = 84, 85, 86, 87
sRB2, sCB = 88, 89
sTS = 90
sP2OK = 93
sA, sT0F, sE, sD = 94, 95, 96, 97
sENT = 100

def srd(r): return f"s[{r}:{r+3}]"
def f2u(x): return struct.unpack("<I", struct.pack("<f", x))[0]

vLANE = 1
vXA = [10, 11, 12, 13]
vWA = 14
vXS = [16, 17]
vWS = [18, 19, 20]
vSTAT = 22
vRSTD = 24
vPOLL = 24
AP = 32
WPHI = 52
BP = 60
CSL = 64
vP2 = 100
WRAW = 104
XF = [128, 132]
WF = 136
ACC = 176

class G:
    def __init__(self, opts):
        self.a = Asm()
        self.o = opts
        self.ool = Asm()
        self.ool._n = 100000

    def build_srd(self, r, ptr, nbytes, a=None):
        a = a or self.a
        a(f"s_mov_b32 s{r}, s{ptr}")
        a(f"s_mov_b32 s{r+1}, s{ptr+1}")
        a(f"s_mov_b32 s{r+2}, {nbytes}")
        a(f"s_mov_b32 s{r+3}, 0x00020000")

    def ts(self, idx, a=None, entry=False, src=None):
        if not self.o.get("ts"): return
        if self.o.get("tsset") is not None and idx not in self.o["tsset"]: return
        a = a or self.a
        if src is not None:
            a("s_waitcnt lgkmcnt(0)")
            a(f"s_mov_b32 s{sTS}, s{src}")
        elif entry: a(f"s_mov_b32 s{sTS}, s{sENT}")
        else: a(f"s_memrealtime s[{sTS}:{sTS+1}]")
        a(f"s_lshl_b32 s{sTS+2}, s2, 3")
        a(f"s_add_u32 s{sTS+2}, s{sTS+2}, s{sWAVE}")
        a(f"s_lshl_b32 s{sTS+2}, s{sTS+2}, 6")
        a(f"s_add_u32 s{sTS+2}, s{sTS+2}, {DBG_OFF + idx*4}")
        a(f"v_mov_b32 v3, {OOB}")
        a(f"v_cmp_eq_u32 vcc, 0, v{vLANE}")
        a(f"v_cndmask_b32 v3, v3, v{vLANE}, vcc")
        a("s_waitcnt lgkmcnt(0)")
        a(f"v_mov_b32 v2, s{sTS}")
        a(f"buffer_store_dword v2, v3, {srd(sWS)}, s{sTS+2} offen")
    def nts(self, idxs):
        if not self.o.get("ts"): return 0
        return sum(1 for i in idxs if self.o.get("tsset") is None or i in self.o["tsset"])

    def xlane_sum(self, v, t, a=None):
        a = a or self.a
        a(f"v_mov_b32 v{t}, v{v}")
        a(f"v_permlane16_swap_b32 v{v}, v{t}")
        a(f"v_add_f32 v{v}, v{v}, v{t}")
        a(f"v_mov_b32 v{t}, v{v}")
        a(f"v_permlane32_swap_b32 v{v}, v{t}")
        a(f"v_add_f32 v{v}, v{v}, v{t}")
    def wave_sum(self, v, t):
        a = self.a
        for r in (8, 4, 2, 1):
            a(f"v_add_f32_dpp v{v}, v{v}, v{v} row_ror:{r} row_mask:0xf bank_mask:0xf")
        self.xlane_sum(v, t)

    def lane0_off(self, dst, a=None):
        a = a or self.a
        a(f"v_mov_b32 v{dst}, {OOB}")
        a(f"v_cmp_eq_u32 vcc, 0, v{vLANE}")
        a(f"v_cndmask_b32 v{dst}, v{dst}, v{vLANE}, vcc")

    def prologue(self):
        a = self.a
        if self.o.get("ts"): a(f"s_memrealtime s[{sENT}:{sENT+1}]")
        a(f"s_load_dwordx16 s[4:19], s[0:1], 0")
        a(f"s_load_dwordx4 s[20:23], s[0:1], 64")
        a(f"s_load_dwordx2 s[24:25], s[0:1], 80")
        a("s_cmp_ge_u32 s2, 256")
        a("s_cbranch_scc1 L_end")
        a("v_lshrrev_b32 v2, 6, v0")
        a(f"v_and_b32 v{vLANE}, 63, v0")
        a(f"v_readfirstlane_b32 s{sWAVE}, v2")
        a(f"s_and_b32 s{sXCD}, s2, 7")
        a(f"s_lshr_b32 s{sT2}, s2, 3")
        a(f"s_and_b32 s{sRB}, s{sXCD}, 1")
        a(f"s_lshl_b32 s{sRB}, s{sRB}, 2")
        a(f"s_and_b32 s{sT3}, s{sT2}, 3")
        a(f"s_add_u32 s{sRB}, s{sRB}, s{sT3}")
        a(f"s_lshr_b32 s{sD}, s{sT2}, 2")
        a(f"s_lshr_b32 s{sE}, s{sXCD}, 1")
        a(f"s_lshl_b32 s{sJIDX}, s{sE}, 3")
        a(f"s_add_u32 s{sJIDX}, s{sJIDX}, s{sD}")
        a(f"s_mul_i32 s{sT3}, s{sE}, 5")
        a(f"s_add_u32 s{sT3}, s{sT3}, s{sD}")
        a(f"s_sub_u32 s{sJOB}, s{sT3}, 3")
        a(f"s_mov_b32 s{sTYPE}, 2")
        a(f"s_cmp_eq_u32 s{sD}, 2")
        a(f"s_cselect_b32 s{sTYPE}, 1, s{sTYPE}")
        a(f"s_cselect_b32 s{sJOB}, s{sE}, s{sJOB}")
        a(f"s_lshl_b32 s{sT3}, s{sE}, 1")
        a(f"s_add_u32 s{sT3}, s{sT3}, s{sD}")
        a(f"s_cmp_lt_u32 s{sD}, 2")
        a(f"s_cselect_b32 s{sTYPE}, 0, s{sTYPE}")
        a(f"s_cselect_b32 s{sJOB}, s{sT3}, s{sJOB}")
        a(f"s_lshr_b32 s{sA}, s{sWAVE}, 2")
        a(f"s_mul_i32 s{sT3}, s{sJOB}, 5")
        a(f"s_lshl_b32 s{sT4}, s{sJOB}, 2")
        a(f"s_add_u32 s{sT4}, s{sT4}, 16")
        a(f"s_cmp_lt_u32 s{sJOB}, 16")
        a(f"s_cselect_b32 s{sT0F}, s{sT3}, s{sT4}")
        a(f"s_lshl_b32 s{sWOFF}, s{sT0F}, 5")
        a(f"s_mul_i32 s{sT3}, s{sJOB}, 160")
        a(f"s_mul_i32 s{sT4}, s{sA}, 1280")
        a(f"s_add_u32 s{sT3}, s{sT3}, s{sT4}")
        a(f"s_add_u32 s{sT3}, s{sT3}, 1280")
        a(f"s_cmp_eq_u32 s{sTYPE}, 0")
        a(f"s_cselect_b32 s{sWOFF}, s{sT3}, s{sWOFF}")
        a(f"s_mul_i32 s{sT3}, s{sJOB}, 320")
        a(f"s_mul_i32 s{sT4}, s{sA}, 160")
        a(f"s_add_u32 s{sT3}, s{sT3}, s{sT4}")
        a(f"s_cmp_eq_u32 s{sTYPE}, 1")
        a(f"s_cselect_b32 s{sWOFF}, s{sT3}, s{sWOFF}")
        a(f"s_movk_i32 s{sSTRIDE}, 3840")
        a(f"s_cmp_eq_u32 s{sTYPE}, 2")
        a(f"s_cselect_b32 s{sSTRIDE}, 3072, s{sSTRIDE}")
        a(f"s_lshl_b32 s{sWCH}, s{sSTRIDE}, 6")
        a(f"v_lshlrev_b32 v8, 5, v{vLANE}")
        a(f"v_mov_b32 v7, {OOB}")
        a(f"v_cmp_gt_u32 vcc, 40, v{vLANE}")
        a(f"v_cndmask_b32 v8, v7, v8, vcc")
        a(f"v_lshrrev_b32 v5, 4, v{vLANE}")
        a(f"v_and_b32 v6, 15, v{vLANE}")
        a(f"v_mul_u32_u24 v5, s{sSTRIDE}, v5")
        a(f"v_lshl_add_u32 v15, v6, 4, v5")
        a(f"v_cmp_gt_u32 vcc, 10, v6")
        a(f"v_cndmask_b32 v15, v7, v15, vcc")
        a(f"s_lshl_b32 s{sT2}, s{sRB}, 8")
        a(f"s_lshl_b32 s{sT3}, s{sJIDX}, 3")
        a(f"s_add_u32 s{sT2}, s{sT2}, s{sT3}")
        a(f"s_add_u32 s{sD}, s{sT2}, s{sWAVE}")
        a(f"s_mul_i32 s{sT2}, s{sD}, 1280")
        a(f"s_and_b32 s{sT3}, s{sWAVE}, 3")
        a(f"s_mul_i32 s{sT4}, s{sT3}, 20")
        a(f"s_mul_i32 s{sT5}, s{sRB}, 80")
        a(f"s_add_u32 s{sT4}, s{sT4}, s{sT5}")
        a(f"s_mul_i32 s{sT4}, s{sT4}, s{sSTRIDE}")
        a(f"s_add_u32 s{sKH}, s{sT4}, s{sWOFF}")
        a(f"s_lshl_b32 s{sTT}, s{sSTRIDE}, 2")
        a(f"v_lshrrev_b32 v3, 3, v{vLANE}")
        a(f"v_and_b32 v4, 7, v{vLANE}")
        a(f"v_lshrrev_b32 v5, 4, v{vLANE}")
        a(f"v_mul_u32_u24 v6, 1280, v3")
        a(f"v_xor_b32 v7, v5, v4")
        a(f"v_lshl_add_u32 v{vXS[0]}, v7, 4, v6")
        a(f"v_add_u32 v5, 4, v5")
        a(f"v_xor_b32 v7, v5, v4")
        a(f"v_lshl_add_u32 v{vXS[1]}, v7, 4, v6")
        a(f"s_lshl_b32 s{sT4}, s{sRB}, 8")
        a(f"s_lshl_b32 s{sT5}, s{sWAVE}, 5")
        a(f"s_add_u32 s{sT4}, s{sT4}, s{sT5}")
        a(f"s_mul_i32 s{sXOFF}, s{sT4}, 1280")
        a(f"s_lshl_b32 s{sXBEG}, s{sWAVE}, 12")
        a(f"s_cmp_lt_u32 s{sT3}, 2")
        a(f"s_cselect_b32 s{sW3F}, 1, 0")
        a(f"s_lshl_b32 s{sT4}, s{sT3}, 6")
        for j in range(3):
            a(f"v_add_u32 v5, s{sT4}, v{vLANE}")
            if j: a(f"v_add_u32 v5, {j*256}, v5")
            a("v_mul_u32_u24 v6, 6554, v5")
            a("v_lshrrev_b32 v6, 16, v6")
            a("v_mul_u32_u24 v7, 10, v6")
            a("v_sub_u32 v7, v5, v7")
            a(f"v_mul_u32_u24 v6, s{sSTRIDE}, v6")
            a(f"v_lshl_add_u32 v{vWS[j]}, v7, 4, v6")
        a(f"s_mul_i32 s{sWBEG}, s{sA}, {WA1}")
        a(f"s_lshl_b32 s{sT4}, s{sT3}, 10")
        a(f"s_add_u32 s{sWBEG}, s{sWBEG}, s{sT4}")
        a(f"s_add_u32 s{sWBEG}, s{sWBEG}, {WBASE}")
        a(f"s_mov_b32 s{sOOB}, {OOB}")
        a(f"s_mov_b32 s{sWDST}, s{sWBEG}")
        a(f"s_mov_b32 s{sXDST}, s{sXBEG}")
        a("s_waitcnt lgkmcnt(0)")
        if self.o.get("ts"): a("s_memrealtime s[26:27]")
        self.build_srd(sX, PX, 2621440)
        a(f"s_cmp_eq_u32 s{sA}, 0")
        a(f"s_cselect_b32 s{sW}, s{PWG}, s{PWU}")
        a(f"s_cselect_b32 s{sW+1}, s{PWG+1}, s{PWU+1}")
        a(f"s_cmp_eq_u32 s{sTYPE}, 2")
        a(f"s_cselect_b32 s{sW}, s{sW}, s{PQKV}")
        a(f"s_cselect_b32 s{sW+1}, s{sW+1}, s{PQKV+1}")
        a(f"s_mov_b32 s{sT3}, 2457600")
        a(f"s_cselect_b32 s{sW+2}, 1966080, s{sT3}")
        a(f"s_mov_b32 s{sW+3}, 0x00020000")
        a(f"buffer_load_dwordx4 v[156:159], v8, {srd(sX)}, s{sT2} offen")
        a(f"buffer_load_dwordx4 v[160:163], v8, {srd(sX)}, s{sT2} offen offset:16")
        for c in range(2):
            for j in range(3): self.dma_w(j)
            for q in range(4): self.dma_x(q)
            if c == 0 and self.o.get("ts"): a(f"s_memrealtime s[{sRB2}:{sRB2+1}]")
            a(f"s_add_u32 s{sWOFF}, s{sWOFF}, s{sWCH}")
            a(f"s_add_u32 s{sWDST}, s{sWDST}, {WST}")
            a(f"s_add_u32 s{sXOFF}, s{sXOFF}, 128")
            a(f"s_add_u32 s{sXDST}, s{sXDST}, {XST}")
        self.build_srd(sWS, PWS, WS_SIZE + (DBG_SIZE if self.o.get("dev") else 0))
        self.build_srd(sDBG, PDBG, 256)
        self.ts(0)
        self.ts(10, entry=True)
        self.ts(14, src=26)
        self.ts(15, src=sRB2)
        nts = self.nts([0, 10, 14, 15])
        nwarm = 0
        a(f"s_cmp_eq_u32 s{sTYPE}, 2")
        a("s_cbranch_scc1 L_nophi")
        self.build_srd(sT0, PPHI, 25600)
        self.wphi_gather(0)
        a(f"s_cmp_eq_u32 s{sTYPE}, 0")
        a("s_cbranch_scc1 L_phikv")
        self.wphi_gather(1)
        a(f"s_waitcnt vmcnt({14+16+nts})")
        a("s_branch L_phidone")
        a.label("L_phikv")
        a(f"s_waitcnt vmcnt({14+8+nts})")
        a("s_branch L_phidone")
        a.label("L_nophi")
        a(f"s_waitcnt vmcnt({14+nts})")
        a.label("L_phidone")
        for i in range(8):
            a(f"v_lshlrev_b32 v{88+2*i}, 16, v{156+i}")
            a(f"v_and_b32 v{89+2*i}, 0xffff0000, v{156+i}")
        a("v_add_f32 v2, v88, v89")
        for i in range(2, 16): a(f"v_add_f32 v2, v2, v{88+i}")
        self.wave_sum(2, 3)
        a(f"v_mul_f32 v2, {f2u(1.0/640):#x}, v2")
        for i in range(16): a(f"v_sub_f32 v{88+i}, v{88+i}, v2")
        a("v_mul_f32 v4, v88, v88")
        for i in range(1, 16): a(f"v_fmac_f32 v4, v{88+i}, v{88+i}")
        a(f"v_cmp_gt_u32 vcc, 40, v{vLANE}")
        a("v_cndmask_b32 v4, 0, v4, vcc")
        self.wave_sum(4, 3)
        a(f"v_mov_b32 v5, {f2u(1e-5):#x}")
        a(f"v_fmac_f32 v5, {f2u(1.0/640):#x}, v4")
        a("v_mov_b32 v4, v2")
        self.lane0_off(6)
        a(f"s_lshl_b32 s{sT2}, s{sD}, 3")
        a(f"s_add_u32 s{sT2}, s{sT2}, {ST_OFF}")
        a(f"buffer_store_dwordx2 v[4:5], v6, {srd(sWS)}, s{sT2} offen sc1")
        a(f"s_mov_b32 s{sMASK}, 0xffff0000")
        a("v_mov_b32 v60, 0"); a("v_mov_b32 v61, 0"); a("v_mov_b32 v62, 0"); a("v_mov_b32 v63, 0")
        a(f"s_cmp_eq_u32 s{sTYPE}, 0")
        a("s_cbranch_scc0 L_nozkv")
        a(f"s_cmp_eq_u32 s{sRB}, 0")
        a("s_cbranch_scc0 L_nozkv")
        a(f"s_lshl_b32 s{sT2}, s{sJOB}, 14")
        a(f"s_lshl_b32 s{sT3}, s{sWAVE}, 11")
        a(f"s_add_u32 s{sT2}, s{sT2}, s{sT3}")
        a(f"s_add_u32 s{sT2}, s{sT2}, {KV_OFF}")
        a(f"v_lshlrev_b32 v7, 4, v{vLANE}")
        a(f"buffer_store_dwordx4 v[60:63], v7, {srd(sWS)}, s{sT2} offen sc1")
        a(f"buffer_store_dwordx4 v[60:63], v7, {srd(sWS)}, s{sT2} offen offset:1024 sc1")
        a(f"s_lshl_b32 s{sT2}, s{sJOB}, 8")
        a(f"s_add_u32 s{sT2}, s{sT2}, {CNT_OFF + 16*256}")
        a(f"buffer_store_dword v60, v6, {srd(sWS)}, s{sT2} offen sc1")
        a.label("L_nozkv")
        a(f"s_cmp_eq_u32 s{sJIDX}, 3")
        a("s_cbranch_scc0 L_nozh")
        a(f"s_lshl_b32 s{sT2}, s{sRB}, 8")
        a(f"s_add_u32 s{sT2}, s{sT2}, {CNT_OFF}")
        a(f"buffer_store_dword v60, v6, {srd(sWS)}, s{sT2} offen sc1")
        a(f"s_add_u32 s{sT2}, s{sT2}, {8*256}")
        a(f"buffer_store_dword v60, v6, {srd(sWS)}, s{sT2} offen sc1")
        a.label("L_nozh")
        a(f"v_and_b32 v5, 31, v{vLANE}")
        a(f"v_lshrrev_b32 v6, 5, v{vLANE}")
        a("v_lshrrev_b32 v7, 1, v5")
        a("v_and_b32 v7, 7, v7")
        a("v_xor_b32 v7, v7, v6")
        a("v_lshlrev_b32 v7, 4, v7")
        a("v_lshl_add_u32 v5, v5, 7, v7")
        a(f"v_add_u32 v5, s{sXBEG}, v5")
        for ks in range(4): a(f"v_xor_b32 v{vXA[ks]}, {ks<<5}, v5")
        a(f"v_lshrrev_b32 v5, 4, v{vLANE}")
        a("v_and_b32 v6, 1, v5")
        a(f"v_mul_u32_u24 v6, {WA1}, v6")
        a("v_lshrrev_b32 v5, 1, v5")
        a("v_lshlrev_b32 v5, 3, v5")
        a(f"v_bfe_u32 v7, v{vLANE}, 2, 2")
        a("v_add_u32 v5, v5, v7")
        a("v_mul_u32_u24 v5, 160, v5")
        a(f"v_and_b32 v7, 3, v{vLANE}")
        a("v_lshl_add_u32 v5, v7, 3, v5")
        a("v_add_u32 v5, v5, v6")
        a(f"v_add_u32 v{vWA}, {WBASE}, v5")
        a(f"s_cmp_eq_u32 s{sWAVE}, 0")
        a("s_cbranch_scc0 L_nozl")
        a(f"v_mov_b32 v7, {L_ZERO}")
        a("ds_write_b128 v7, v[60:63]")
        a("v_mov_b32 v4, 0x3f80"); a("v_mov_b32 v5, 0")
        a("ds_write_b64 v7, v[4:5] offset:16")
        a.label("L_nozl")
        for t in range(5):
            a(f"v_mov_b32 v{AP+4*t+2}, 0"); a(f"v_mov_b32 v{AP+4*t+3}, 0")
        for i in range(80): a(f"v_mov_b32 v{ACC+i}, 0")
        self.p2_setup()
        a(f"s_mov_b32 s{sWSTp}, {WST}"); a(f"s_mov_b32 s{sWSTm}, {(-2*WST) & 0xffffffff}")
        a(f"s_mov_b32 s{sXSTp}, {XST}"); a(f"s_mov_b32 s{sXSTm}, {(-2*XST) & 0xffffffff}")
        a(f"s_add_u32 s{sWEND}, s{sWBEG}, {3*WST}")
        a(f"s_add_u32 s{sXEND}, s{sXBEG}, {3*XST}")
        a(f"s_mov_b32 s{sRST}, 0")
        a(f"s_mov_b32 s{sC}, 0")
        a(f"s_mov_b32 s{sSPEC}, {(1<<0)|(1<<1)|(1<<2)|(1<<3)|(1<<4)|(1<<6)|(1<<7)|(1<<8)|(1<<9)}")
        a(f"s_cmp_eq_u32 s{sTYPE}, 2")
        a("s_cbranch_scc1 L_w0f")
        a(f"s_cmp_eq_u32 s{sTYPE}, 0")
        a("s_cbranch_scc1 L_w0k")
        a(f"s_waitcnt vmcnt(24) lgkmcnt(0)")
        a("s_branch L_w0d")
        a.label("L_w0k")
        a(f"s_waitcnt vmcnt(16) lgkmcnt(0)")
        a("s_branch L_w0d")
        a.label("L_w0f")
        a(f"s_waitcnt vmcnt(8) lgkmcnt(0)")
        a.label("L_w0d")
        a("s_barrier")
        self.ts(1)

    def dma_w(self, j):
        a = self.a
        if j < 2:
            a(f"s_add_u32 m0, s{sWDST}, {j*4096}")
            a("s_nop 0")
            a(f"buffer_load_dwordx4 v{vWS[j]}, {srd(sW)}, s{sWOFF} offen lds")
        else:
            a(f"s_add_u32 s{sT4}, s{sWDST}, 8192")
            a(f"s_cmp_lg_u32 s{sW3F}, 0")
            a(f"s_cselect_b32 m0, s{sT4}, {L_DUMMY}")
            a(f"s_cselect_b32 s{sT3}, s{sWOFF}, s{sOOB}")
            a(f"buffer_load_dwordx4 v{vWS[j]}, {srd(sW)}, s{sT3} offen lds")

    def dma_x(self, q):
        a = self.a
        a(f"s_add_u32 m0, s{sXDST}, {q*1024}")
        a(f"s_add_u32 s{sT5}, s{sXOFF}, {q*8*1280}")
        a(f"buffer_load_dwordx4 v{vXS[q&1]}, {srd(sX)}, s{sT5} offen lds")

    def wphi_gather(self, which):
        a = self.a
        a(f"s_lshr_b32 s{sT2}, s{sWAVE}, 1")
        a(f"s_and_b32 s{sT3}, s{sWAVE}, 1")
        a(f"s_lshl_b32 s{sT4}, s{sJOB}, 2")
        a(f"s_lshl_b32 s{sT5}, s{sJOB}, 3")
        a(f"s_cmp_eq_u32 s{sTYPE}, 0")
        a(f"s_cselect_b32 s{sT4}, s{sT4}, s{sT5}")
        a(f"s_add_u32 s{sT4}, s{sT4}, s{sT2}")
        if which: a(f"s_add_u32 s{sT4}, s{sT4}, 4")
        a(f"s_mul_i32 s{sT4}, s{sT4}, 800")
        a(f"s_and_b32 s{sT5}, s{sT2}, 1")
        a(f"s_lshl_b32 s{sT3}, s{sT3}, 2")
        a(f"s_sub_u32 s{sT3}, s{sT3}, s{sT5}")
        a(f"v_bfe_u32 v2, v{vLANE}, 3, 2")
        a(f"v_and_b32 v3, 3, v{vLANE}")
        a("v_lshl_add_u32 v2, v2, 2, v3")
        a(f"v_bfe_u32 v3, v{vLANE}, 2, 1")
        a("v_mul_u32_u24 v3, 10, v3")
        a("v_add_u32 v3, v3, v2")
        a(f"v_lshrrev_b32 v4, 5, v{vLANE}")
        a(f"v_add_u32 v4, s{sT3}, v4")
        for jh in range(2):
            if jh: a("v_add_u32 v4, 2, v4")
            a("v_mul_u32_u24 v5, 160, v4")
            a("v_lshl_add_u32 v5, v3, 1, v5")
            a("v_cmp_gt_u32 vcc, 5, v4")
            a(f"v_mov_b32 v6, {OOB}")
            a("v_cndmask_b32 v5, v6, v5, vcc")
            a("v_cmp_gt_u32 vcc, 10, v2")
            a("v_cndmask_b32 v5, v6, v5, vcc")
            for e in range(4):
                d = WRAW + 8 * which + 4 * jh + e
                a(f"buffer_load_ushort v{d}, v5, {srd(sT0)}, s{sT4} offen offset:{e*40}")

    def p2_setup(self):
        a = self.a
        a(f"s_lshr_b32 s{sT2}, s2, 3")
        a(f"s_sub_u32 s{sT3}, s{sT2}, 4")
        a(f"s_cmp_lt_u32 s{sT2}, 8")
        a(f"s_cselect_b32 s{sT3}, s{sT2}, s{sT3}")
        a(f"s_and_b32 s{sT5}, s{sXCD}, 1")
        a(f"s_sub_u32 s{sT4}, 28, s{sT5}")
        a(f"s_cmp_lt_u32 s{sT3}, s{sT4}")
        a(f"s_cselect_b32 s{sP2OK}, 1, 0")
        a(f"s_cmp_eq_u32 s{sTYPE}, 1")
        a(f"s_cselect_b32 s{sP2OK}, 0, s{sP2OK}")
        a(f"s_lshr_b32 s{sT4}, s{sXCD}, 1")
        a(f"s_mul_i32 s{sT4}, s{sT4}, 55")
        a(f"s_mul_i32 s{sT5}, s{sT5}, 28")
        a(f"s_add_u32 s{sT4}, s{sT4}, s{sT5}")
        a(f"s_add_u32 s{sT4}, s{sT4}, s{sT3}")
        a(f"s_mul_i32 s{sRB2}, s{sT4}, 6554")
        a(f"s_lshr_b32 s{sRB2}, s{sRB2}, 16")
        a(f"s_mul_i32 s{sT2}, s{sRB2}, 10")
        a(f"s_sub_u32 s{sCB}, s{sT4}, s{sT2}")
        a(f"v_lshrrev_b32 v2, 3, v{vLANE}")
        a(f"v_and_b32 v3, 7, v{vLANE}")
        a("v_bfe_u32 v4, v2, 1, 1")
        a("v_lshlrev_b32 v4, 2, v4")
        a("v_xor_b32 v3, v3, v4")
        a("v_lshlrev_b32 v3, 4, v3")
        a("v_lshrrev_b32 v4, 2, v2")
        a("v_lshlrev_b32 v4, 3, v4")
        a("v_and_b32 v5, 3, v2")
        a("v_add_u32 v4, v4, v5")
        a("v_mul_u32_u24 v4, 1280, v4")
        a(f"v_add_u32 v{vP2}, v4, v3")
        a(f"v_add_u32 v{vP2+1}, {4*1280}, v{vP2}")
        a("v_mul_u32_u24 v4, 2560, v2")
        a(f"v_add_u32 v{vP2+2}, v4, v3")
        a(f"v_add_u32 v{vP2+3}, 1280, v{vP2+2}")
        a(f"s_and_b32 s{sT2}, s{sWAVE}, 1")
        a(f"s_cmp_eq_u32 s{sT2}, 0")
        a("s_cselect_b64 vcc, -1, 0")
        a(f"v_cndmask_b32 v99, v{vP2+1}, v{vP2}, vcc")

    def p2_pref_begin(self):
        a = self.a
        self.build_srd(sT0, PWD, 1966080)
        self.build_srd(sT1, PWO, 819200)
        a(f"s_lshr_b32 s{sA}, s{sWAVE}, 1")
        a(f"s_mul_i32 s{sA}, s{sA}, {16*1280}")
        a(f"s_lshl_b32 s{sE}, s{sCB}, 7")
        a(f"s_add_u32 s{sA}, s{sA}, s{sE}")
        a(f"s_lshl_b32 s{sE}, s{sWAVE}, 10")
    def p2_pref(self, i):
        a = self.a
        st, kh = i >> 1, i & 1
        row0 = (48 * kh + 4 * st) * 16
        a(f"s_add_u32 m0, s{sE}, {st * 16384 + kh * 8192}")
        a(f"s_add_u32 s{sTMP}, s{sA}, {row0 * 1280}")
        a(f"buffer_load_dwordx4 v99, {srd(sT0)}, s{sTMP} offen lds")

    def rd_x(self, ks):
        r = XF[ks & 1]
        self.a(f"ds_read_b128 v[{r}:{r+3}], v{vXA[ks]}")
    def rd_w(self, ks, t):
        r = WF + 4 * t
        self.a(f"ds_read_b64_tr_b16 v[{r}:{r+1}], v{vWA} offset:{ks*2560 + t*32}")
        self.a(f"ds_read_b64_tr_b16 v[{r+2}:{r+3}], v{vWA} offset:{ks*2560 + 640 + t*32}")

    def mainloop(self):
        a = self.a
        self.rd_x(0)
        for t in range(5): self.rd_w(0, t)
        a.label("L_loop")
        for ks in range(4):
            xf = XF[ks & 1]
            nks = (ks + 1) & 3
            if ks == 3:
                a(f"s_bitcmp1_b32 s{sSPEC}, s{sC}")
                a("s_cbranch_scc1 L_pre_special")
                a("s_waitcnt vmcnt(4) lgkmcnt(8)")
                a.label("L_pre_back")
                a("s_barrier")
                a(f"v_add_u32 v{vWA}, s{sDW}, v{vWA}")
                a(f"v_add_u32 v{vXA[0]}, s{sDX}, v{vXA[0]}")
                a(f"s_bitcmp1_b32 s{sSPEC}, s{sC}")
                a("s_cbranch_scc1 L_post_special")
                a.label("L_post_back")
            for t in range(5):
                a(f"s_waitcnt lgkmcnt({8 if t == 0 else 9})")
                a(f"v_mfma_f32_32x32x16_bf16 v[{ACC+16*t}:{ACC+16*t+15}], v[{WF+4*t}:{WF+4*t+3}], v[{xf}:{xf+3}], v[{ACC+16*t}:{ACC+16*t+15}]")
                if t == 0: self.rd_x(nks)
                self.rd_w(nks, t)
                xs = {(0, 1): 0, (0, 4): 1, (1, 2): 2, (2, 0): 3}
                if (ks, t) in xs:
                    q = xs[(ks, t)]
                    a(f"s_cmp_ge_u32 s{sC}, 8")
                    a(f"s_cbranch_scc1 L_skx{q}")
                    self.dma_x(q)
                    a.label(f"L_skx{q}")
                if ks == 2 and t == 1:
                    a(f"s_add_u32 s{sXOFF}, s{sXOFF}, 128")
                    a(f"s_add_u32 s{sXDST}, s{sXDST}, {XST}")
                    a(f"s_cmp_ge_u32 s{sXDST}, s{sXEND}")
                    a(f"s_cselect_b32 s{sXDST}, s{sXBEG}, s{sXDST}")
                if ks == 2 and t == 2:
                    a(f"s_add_u32 s{sRST}, s{sRST}, 1")
                    a(f"s_cmp_eq_u32 s{sRST}, 3")
                    a(f"s_cselect_b32 s{sDW}, s{sWSTm}, s{sWSTp}")
                    a(f"s_cselect_b32 s{sDX}, s{sXSTm}, s{sXSTp}")
                    a(f"s_cselect_b32 s{sRST}, 0, s{sRST}")
                if ks == 3:
                    if t < 3:
                        a(f"v_add_u32 v{vXA[t+1]}, s{sDX}, v{vXA[t+1]}")
                        a(f"s_cmp_ge_u32 s{sC}, 8")
                        a(f"s_cbranch_scc1 L_skw{t}")
                        self.dma_w(t)
                        a.label(f"L_skw{t}")
                    if t == 4:
                        a(f"s_add_u32 s{sWOFF}, s{sWOFF}, s{sWCH}")
                        a(f"s_add_u32 s{sWDST}, s{sWDST}, {WST}")
                        a(f"s_cmp_ge_u32 s{sWDST}, s{sWEND}")
                        a(f"s_cselect_b32 s{sWDST}, s{sWBEG}, s{sWDST}")
        a(f"s_add_u32 s{sC}, s{sC}, 1")
        a(f"s_cmp_lt_u32 s{sC}, 10")
        a("s_cbranch_scc1 L_loop")
        o = self.ool
        o.label("L_pre_special")
        o(f"s_cmp_ge_u32 s{sC}, 8")
        o("s_cbranch_scc1 L_pre89")
        o("s_waitcnt vmcnt(4) lgkmcnt(8)")
        o(f"s_cmp_eq_u32 s{sC}, 7")
        o("s_cbranch_scc0 L_pre_back")
        o(f"s_cmp_eq_u32 s{sWAVE}, 0")
        o("s_cbranch_scc0 L_pre_back")
        o(f"s_mov_b32 s{sT2}, 0")
        o.label("L_spin_st")
        o("s_waitcnt vmcnt(0)")
        o(f"v_and_b32 v2, v{vPOLL}, v{vPOLL+1}")
        for i in range(2, 8): o(f"v_and_b32 v2, v2, v{vPOLL+i}")
        o("v_and_b32 v2, 32, v2")
        o("s_nop 1")
        o(f"v_readfirstlane_b32 s{sT3}, v2")
        o("s_nop 3")
        o(f"s_cmp_eq_u32 s{sT3}, 32")
        o("s_cbranch_scc1 L_pre_back")
        o(f"s_add_u32 s{sT2}, s{sT2}, 1")
        o(f"s_cmp_gt_u32 s{sT2}, 200000")
        o("s_cbranch_scc1 L_pre_back")
        o("s_sleep 4")
        o(f"v_mov_b32 v2, 0")
        o(f"buffer_load_dwordx4 v[{vPOLL}:{vPOLL+3}], v2, {srd(sDBG)}, 0 offen sc1")
        o(f"buffer_load_dwordx4 v[{vPOLL+4}:{vPOLL+7}], v2, {srd(sDBG)}, 0 offen offset:16 sc1")
        o("s_branch L_spin_st")
        o.label("L_pre89")
        o("s_waitcnt vmcnt(0) lgkmcnt(8)")
        o("s_branch L_pre_back")
        o.label("L_post_special")
        o(f"s_cmp_eq_u32 s{sC}, 9")
        o("s_cbranch_scc1 L_post9")
        o(f"s_cmp_eq_u32 s{sC}, 8")
        o("s_cbranch_scc1 L_post8")
        o(f"s_cmp_eq_u32 s{sC}, 7")
        o("s_cbranch_scc1 L_post7")
        o(f"s_cmp_eq_u32 s{sC}, 0")
        o("s_cbranch_scc1 L_postA")
        o(f"s_cmp_eq_u32 s{sC}, 1")
        o("s_cbranch_scc1 L_post0")
        o(f"s_cmp_eq_u32 s{sC}, 4")
        o("s_cbranch_scc1 L_postW")
        o(f"s_cmp_eq_u32 s{sWAVE}, 0")
        o("s_cbranch_scc0 L_post_back")
        o(f"s_cmp_eq_u32 s{sC}, 2")
        o("s_cbranch_scc1 L_post1")
        o(f"s_cmp_eq_u32 s{sC}, 3")
        o("s_cbranch_scc0 L_post6")
        o(f"v_mov_b32 v2, 1")
        self.lane0_off(3, o)
        o(f"s_lshl_b32 s{sT2}, s{sRB}, 2")
        o(f"buffer_atomic_add v2, v3, {srd(sDBG)}, s{sT2} offen")
        o("s_branch L_post_back")
        o.label("L_post6")
        o(f"v_mov_b32 v2, 0")
        o(f"buffer_load_dwordx4 v[{vPOLL}:{vPOLL+3}], v2, {srd(sDBG)}, 0 offen sc1")
        o(f"buffer_load_dwordx4 v[{vPOLL+4}:{vPOLL+7}], v2, {srd(sDBG)}, 0 offen offset:16 sc1")
        o("s_branch L_post_back")
        o.label("L_postA")
        for i in range(5):
            o(f"buffer_load_dwordx4 v[{64+4*i}:{67+4*i}], v15, {srd(sW)}, s{sKH} offen")
            if i < 4: o(f"s_add_u32 s{sKH}, s{sKH}, s{sTT}")
        o("s_branch L_post_back")
        o.label("L_postW")
        if not self.o.get("nowarm"):
            self.build_srd(sT0, PWD, 1966080, o)
            self.build_srd(sT1, PWO, 819200, o)
            o(f"s_lshl_b32 s{sT2}, s2, 3")
            o(f"s_add_u32 s{sT2}, s{sT2}, s{sWAVE}")
            o(f"v_lshlrev_b32 v2, 7, v{vLANE}")
            o(f"v_mov_b32 v3, {OOB}")
            o(f"v_cmp_gt_u32 vcc, 8, v{vLANE}")
            o("s_nop 1")
            o("v_cndmask_b32 v4, v3, v2, vcc")
            o(f"s_mul_i32 s{sT3}, s{sT2}, 960")
            o(f"buffer_load_dword v120, v4, {srd(sT0)}, s{sT3} offen")
            o(f"v_cmp_gt_u32 vcc, 4, v{vLANE}")
            o("s_nop 1")
            o("v_cndmask_b32 v4, v3, v2, vcc")
            o(f"s_mul_i32 s{sT3}, s{sT2}, 400")
            o(f"buffer_load_dword v121, v4, {srd(sT1)}, s{sT3} offen")
        o("s_branch L_post_back")
        o.label("L_post0")
        for e in range(4):
            o(f"v_lshlrev_b32 v{84+2*e}, 16, v{64+e}")
            o(f"v_and_b32 v{85+2*e}, s{sMASK}, v{64+e}")
        for i in range(1, 5):
            for e in range(4):
                o(f"v_lshlrev_b32 v92, 16, v{64+4*i+e}")
                o(f"v_and_b32 v93, s{sMASK}, v{64+4*i+e}")
                o(f"v_add_f32 v{84+2*e}, v{84+2*e}, v92")
                o(f"v_add_f32 v{85+2*e}, v{85+2*e}, v93")
        for e in range(8): self.xlane_sum(84 + e, 92 + (e & 1), o)
        o(f"v_lshlrev_b32 v5, 5, v{vLANE}")
        o(f"s_mul_i32 s{sT2}, s{sWAVE}, 320")
        o(f"s_add_u32 s{sT2}, s{sT2}, {L_CSP}")
        o(f"v_add_u32 v5, s{sT2}, v5")
        o(f"v_mov_b32 v7, {L_DUMMY}")
        o(f"v_cmp_gt_u32 vcc, 10, v{vLANE}")
        o("v_cndmask_b32 v5, v7, v5, vcc")
        o("ds_write_b128 v5, v[84:87]")
        o("ds_write_b128 v5, v[88:91] offset:16")
        o("s_branch L_post_back")
        o.label("L_post1")
        o(f"v_cmp_le_u32 vcc, 10, v{vLANE}")
        o(f"v_subrev_u32 v7, 10, v{vLANE}")
        o(f"v_cndmask_b32 v7, v{vLANE}, v7, vcc")
        o("v_cndmask_b32 v8, 0, 1, vcc")
        o("v_mul_u32_u24 v5, 1280, v8")
        o("v_lshl_add_u32 v5, v7, 5, v5")
        o(f"v_add_u32 v5, {L_CSP}, v5")
        o(f"v_mov_b32 v6, {L_ZERO}")
        o(f"v_cmp_gt_u32 vcc, 20, v{vLANE}")
        o("v_cndmask_b32 v5, v6, v5, vcc")
        for k in range(4):
            o(f"ds_read_b128 v[{64+8*k}:{67+8*k}], v5 offset:{k*320}")
            o(f"ds_read_b128 v[{68+8*k}:{71+8*k}], v5 offset:{k*320+16}")
        o("v_lshrrev_b32 v5, 1, v7")
        o("v_lshlrev_b32 v5, 5, v5")
        o("v_lshl_add_u32 v5, v8, 4, v5")
        o("v_and_b32 v6, 1, v7")
        o("v_lshl_add_u32 v5, v6, 3, v5")
        o("v_lshlrev_b32 v5, 2, v5")
        o(f"v_mov_b32 v6, {OOB}")
        o("v_cndmask_b32 v5, v6, v5, vcc")
        o(f"s_lshl_b32 s{sT2}, s{sJIDX}, 3")
        o(f"s_add_u32 s{sT2}, s{sT2}, s{sRB}")
        o(f"s_mul_i32 s{sT2}, s{sT2}, 640")
        o(f"s_add_u32 s{sT2}, s{sT2}, {CSP_OFF}")
        o("s_waitcnt lgkmcnt(0)")
        for e in range(8):
            o(f"v_add_f32 v{64+e}, v{64+e}, v{72+e}")
            o(f"v_add_f32 v{80+e}, v{80+e}, v{88+e}")
            o(f"v_add_f32 v{64+e}, v{64+e}, v{80+e}")
        o(f"buffer_store_dwordx4 v[64:67], v5, {srd(sWS)}, s{sT2} offen sc1")
        o(f"buffer_store_dwordx4 v[68:71], v5, {srd(sWS)}, s{sT2} offen offset:16 sc1")
        o("s_branch L_post_back")
        o.label("L_post7")
        o(f"v_and_b32 v2, 31, v{vLANE}")
        o("v_lshlrev_b32 v3, 3, v2")
        o(f"s_lshl_b32 s{sT2}, s{sRB}, 8")
        o(f"s_lshl_b32 s{sT3}, s{sWAVE}, 5")
        o(f"s_add_u32 s{sT2}, s{sT2}, s{sT3}")
        o(f"s_lshl_b32 s{sT2}, s{sT2}, 3")
        o(f"s_add_u32 s{sT2}, s{sT2}, {ST_OFF}")
        o(f"buffer_load_dwordx2 v[{vSTAT}:{vSTAT+1}], v3, {srd(sWS)}, s{sT2} offen sc1")
        o(f"s_cmp_ge_u32 s{sWAVE}, 5")
        o("s_cbranch_scc1 L_post_back")
        o("v_lshlrev_b32 v3, 2, v2")
        o(f"s_mul_i32 s{sT2}, s{sJIDX}, {8*640}")
        o(f"s_lshl_b32 s{sT3}, s{sWAVE}, 7")
        o(f"s_add_u32 s{sT2}, s{sT2}, s{sT3}")
        o(f"s_add_u32 s{sT2}, s{sT2}, {CSP_OFF}")
        for r in range(8):
            if r * 640 < 4096: o(f"buffer_load_dword v{CSL+r}, v3, {srd(sWS)}, s{sT2} offen offset:{r*640} sc1")
            else:
                o(f"s_add_u32 s{sT3}, s{sT2}, {r*640}")
                o(f"buffer_load_dword v{CSL+r}, v3, {srd(sWS)}, s{sT3} offen sc1")
        o("s_branch L_post_back")
        o.label("L_post8")
        o(f"v_rsq_f32 v{vRSTD}, v{vSTAT+1}")
        o(f"v_sub_f32 v2, 0, v{vSTAT}")
        o(f"v_cvt_pk_bf16_f32 v{BP}, v2, v2")
        o(f"v_and_b32 v3, s{sMASK}, v{BP}")
        o("v_sub_f32 v3, v2, v3")
        o(f"v_cvt_pk_bf16_f32 v{BP+1}, v3, 0")
        o(f"v_mov_b32 v{BP+2}, 0"); o(f"v_mov_b32 v{BP+3}, 0")
        o(f"s_cmp_eq_u32 s{sTYPE}, 2")
        o("s_cbranch_scc1 L_post8b")
        for i in range(8): o(f"v_lshl_or_b32 v{WPHI+i}, v{WRAW+2*i+1}, 16, v{WRAW+2*i}")
        o(f"v_lshlrev_b32 v6, 4, v{vLANE}")
        o(f"s_lshl_b32 s{sT2}, s{sWAVE}, 10")
        o(f"s_add_u32 s{sT2}, s{sT2}, {L_WPHI}")
        o(f"v_add_u32 v6, s{sT2}, v6")
        o(f"ds_write_b128 v6, v[{WPHI}:{WPHI+3}]")
        o(f"ds_write_b128 v6, v[{WPHI+4}:{WPHI+7}] offset:8192")
        o.label("L_post8b")
        o(f"s_cmp_ge_u32 s{sWAVE}, 5")
        o("s_cbranch_scc1 L_post_back")
        for r in (0, 2, 4, 6): o(f"v_add_f32 v{CSL+r}, v{CSL+r}, v{CSL+r+1}")
        o(f"v_add_f32 v{CSL}, v{CSL}, v{CSL+2}"); o(f"v_add_f32 v{CSL+4}, v{CSL+4}, v{CSL+6}")
        o(f"v_add_f32 v{CSL}, v{CSL}, v{CSL+4}")
        o(f"v_cvt_pk_bf16_f32 v5, v{CSL}, 0")
        o("v_lshlrev_b32 v2, 16, v5")
        o(f"v_sub_f32 v2, v{CSL}, v2")
        o(f"v_cvt_pk_bf16_f32 v4, v{CSL}, v2")
        o(f"v_lshlrev_b32 v6, 3, v{vLANE}")
        o(f"s_lshl_b32 s{sT2}, s{sWAVE}, 8")
        o(f"s_add_u32 s{sT2}, s{sT2}, {L_CSP}")
        o(f"v_add_u32 v6, s{sT2}, v6")
        o(f"v_mov_b32 v7, {L_DUMMY}")
        o(f"v_cmp_gt_u32 vcc, 32, v{vLANE}")
        o("s_nop 1")
        o("v_cndmask_b32 v6, v7, v6, vcc")
        o("ds_write_b64 v6, v[4:5]")
        o("s_branch L_post_back")
        o.label("L_post9")
        o(f"v_lshlrev_b32 v6, 3, v{vLANE}")
        o(f"v_add_u32 v6, {L_CSP}, v6")
        o(f"v_cmp_gt_u32 vcc, 32, v{vLANE}")
        o(f"v_mov_b32 v7, {L_ZERO}")
        o("s_nop 1")
        o("v_cndmask_b32 v8, v7, v6, vcc")
        o("v_mov_b32 v9, 256")
        o("v_cndmask_b32 v9, 0, v9, vcc")
        for t in range(5):
            o(f"ds_read_b64 v[{AP+4*t}:{AP+4*t+1}], v8")
            if t < 4: o("v_add_u32 v8, v8, v9")
        o("s_branch L_post_back")

    def mean_corr(self):
        a = self.a
        a("s_waitcnt lgkmcnt(0)")
        for t in range(5):
            b = AP + 4 * t
            a(f"v_mfma_f32_32x32x16_bf16 v[{ACC+16*t}:{ACC+16*t+15}], v[{b}:{b+3}], v[{BP}:{BP+3}], v[{ACC+16*t}:{ACC+16*t+15}]")

    def arrive(self):
        a = self.a
        lab = a.uniq("L_arr")
        a(f"s_cmp_eq_u32 s{sWAVE}, 0")
        a(f"s_cbranch_scc0 {lab}")
        a("v_mov_b32 v2, 1")
        self.lane0_off(3)
        a(f"buffer_atomic_add v2, v3, {srd(sWS)}, s{sT2} offen")
        a.label(lab)

    def poll2(self, offA, offB, target):
        a = self.a
        lab = a.uniq("L_poll"); done = a.uniq("L_polld")
        a(f"s_mov_b32 s{sT4}, 0")
        a("v_mov_b32 v3, 0")
        a.label(lab)
        a(f"buffer_load_dword v2, v3, {srd(sWS)}, s{offA} offen sc1")
        a(f"buffer_load_dword v4, v3, {srd(sWS)}, s{offB} offen sc1")
        a("s_waitcnt vmcnt(0)")
        a("v_min_u32 v2, v2, v4")
        a("s_nop 0")
        a(f"v_readfirstlane_b32 s{sT5}, v2")
        a("s_nop 3")
        a(f"s_cmp_ge_u32 s{sT5}, {target}")
        a(f"s_cbranch_scc1 {done}")
        a(f"s_add_u32 s{sT4}, s{sT4}, 1")
        a(f"s_cmp_gt_u32 s{sT4}, 300000")
        a(f"s_cbranch_scc1 {done}")
        a("s_sleep 1")
        a(f"s_branch {lab}")
        a.label(done)

    def epi_ffn(self):
        a = self.a
        a("s_barrier")
        self.ts(11)
        pf = self.a.uniq("L_pf")
        a(f"v_mul_f32 v25, {f2u(-LOG2E):#x}, v{vRSTD}")
        a(f"v_lshlrev_b32 v26, 4, v{vLANE}")
        self.p2_pref_begin()
        a(f"s_lshl_b32 s{sT2}, s{sRB}, 3")
        a(f"s_add_u32 s{sT2}, s{sT2}, s{sWAVE}")
        a(f"s_mul_i32 s{sT2}, s{sT2}, 136")
        a(f"s_add_u32 s{sT2}, s{sT2}, s{sT0F}")
        a(f"s_lshl_b32 s{sT2}, s{sT2}, 10")
        a(f"s_cmp_eq_u32 s{sP2OK}, 0")
        a(f"s_cselect_b32 s{sA}, s{sOOB}, s{sA}")
        npf = 0
        for t in range(5):
            A0 = ACC + 16 * t
            T = 64 + 12 * (t & 1)
            blocks = [
                [f"v_mul_f32 v{T+r}, v{A0+r}, v25" for r in range(8)],
                [f"v_exp_f32 v{T+r}, v{T+r}" for r in range(8)],
                [f"v_mul_f32 v{A0+r}, v{A0+r}, v{A0+8+r}" for r in range(8)],
                [f"v_fma_f32 v{T+r}, v{T+r}, v23, v23" for r in range(8)],
                [f"v_rcp_f32 v{T+r}, v{T+r}" for r in range(8)],
                [f"v_mul_f32 v{A0+r}, v{A0+r}, v{T+r}" for r in range(8)],
                [f"v_cvt_pk_bf16_f32 v{T+8+d}, v{A0+2*d}, v{A0+2*d+1}" for d in range(4)],
            ]
            for bi, blk in enumerate(blocks):
                for op in blk: a(op)
                if bi in (0, 1, 3, 4) and npf < 20:
                    self.p2_pref(npf); npf += 1
            if t == 4:
                a(f"s_cmp_ge_u32 s{sJOB}, 16")
                a("s_cbranch_scc1 L_ffn_nost")
                a(f"s_add_u32 s{sT2}, s{sT2}, 4096")
                a(f"buffer_store_dwordx4 v[{T+8}:{T+11}], v26, {srd(sWS)}, s{sT2} offen sc1")
            else:
                a(f"buffer_store_dwordx4 v[{T+8}:{T+11}], v26, {srd(sWS)}, s{sT2} offen offset:{t*1024} sc1")
        a.label("L_ffn_nost")
        self.ts(12)
        a("s_waitcnt vmcnt(0)")
        a("s_barrier")
        a(f"s_lshl_b32 s{sT2}, s{sRB}, 8")
        a(f"s_add_u32 s{sT2}, s{sT2}, {CNT_OFF}")
        self.arrive()
        self.ts(3)

    def softmax10(self, D, E, PK, c1, T):
        a = self.a
        mx, mn, t0, t1, sp, sn = T, T+1, T+2, T+3, T+4, T+5
        a(f"v_max3_f32 v{mx}, v{D}, v{D+1}, v{D+2}")
        a(f"v_min3_f32 v{mn}, v{D}, v{D+1}, v{D+2}")
        for i in (3, 5, 7):
            a(f"v_max3_f32 v{mx}, v{mx}, v{D+i}, v{D+i+1}")
            a(f"v_min3_f32 v{mn}, v{mn}, v{D+i}, v{D+i+1}")
        a(f"v_max_f32 v{mx}, v{mx}, v{D+9}")
        a(f"v_min_f32 v{mn}, v{mn}, v{D+9}")
        a(f"v_mov_b32 v{t0}, v{mx}")
        a(f"v_mov_b32 v{t1}, v{mn}")
        a(f"v_permlane32_swap_b32 v{mx}, v{t0}")
        a(f"v_permlane32_swap_b32 v{mn}, v{t1}")
        a(f"v_max_f32 v{mx}, v{mx}, v{t0}")
        a(f"v_min_f32 v{mn}, v{mn}, v{t1}")
        a(f"v_mul_f32 v{mx}, v{mx}, v{c1}")
        a(f"v_mul_f32 v{mn}, v{mn}, v{c1}")
        for i in range(10):
            a(f"v_fma_f32 v{E+i}, v{D+i}, v{c1}, -v{mx}")
            a(f"v_fma_f32 v{E+10+i}, -v{D+i}, v{c1}, v{mn}")
        for i in range(20): a(f"v_exp_f32 v{E+i}, v{E+i}")
        a(f"v_add_f32 v{sp}, v{E}, v{E+1}")
        a(f"v_add_f32 v{sn}, v{E+10}, v{E+11}")
        for i in range(2, 10):
            a(f"v_add_f32 v{sp}, v{sp}, v{E+i}")
            a(f"v_add_f32 v{sn}, v{sn}, v{E+10+i}")
        a(f"v_mov_b32 v{t0}, v{sp}")
        a(f"v_mov_b32 v{t1}, v{sn}")
        a(f"v_permlane32_swap_b32 v{sp}, v{t0}")
        a(f"v_permlane32_swap_b32 v{sn}, v{t1}")
        a(f"v_add_f32 v{sp}, v{sp}, v{t0}")
        a(f"v_add_f32 v{sn}, v{sn}, v{t1}")
        a(f"v_rcp_f32 v{sp}, v{sp}")
        a(f"v_rcp_f32 v{sn}, v{sn}")
        for i in range(10):
            a(f"v_mul_f32 v{E+i}, v{E+i}, v{sp}")
            a(f"v_mul_f32 v{E+10+i}, v{E+10+i}, v{sn}")
        for i in range(10):
            a(f"v_cvt_pk_bf16_f32 v{PK+i}, v{E+2*i}, v{E+2*i+1}")

    def cvtP(self, P, half):
        a = self.a
        for t in range(5):
            for i in range(2):
                G_ = 2 * t + i
                r = ACC + 16 * t + 8 * half + 4 * i
                a(f"v_cvt_pk_bf16_f32 v{P+2*G_}, v{r}, v{r+1}")
                a(f"v_cvt_pk_bf16_f32 v{P+2*G_+1}, v{r+2}, v{r+3}")
        a(f"v_mov_b32 v{P+20}, 0"); a(f"v_mov_b32 v{P+21}, 0")

    def rd_af(self, idx0, AF):
        for s_ in range(2):
            self.a(f"ds_read_b128 v[{AF+4*s_}:{AF+4*s_+3}], v30 offset:{(idx0+s_)*1024}")
    def feat_mfma(self, D, P, p, AF):
        a = self.a
        G0 = [0, 2, 5, 7][p]
        a(f"v_mfma_f32_32x32x16_bf16 v[{D}:{D+15}], v[{AF}:{AF+3}], v[{P+2*G0}:{P+2*G0+3}], 0")
        a(f"v_mfma_f32_32x32x16_bf16 v[{D}:{D+15}], v[{AF+4}:{AF+7}], v[{P+2*G0+4}:{P+2*G0+7}], v[{D}:{D+15}]")

    def epi_kv(self):
        a = self.a
        P = 64
        D = [104, 120]
        E = 136
        PK = 88
        T = 156
        AFa = [40, 48, 8, 16]
        a(f"v_mul_f32 v25, {f2u(LOG2E):#x}, v{vRSTD}")
        a(f"v_lshlrev_b32 v30, 4, v{vLANE}")
        a(f"v_add_u32 v30, {L_WPHI}, v30")
        self.rd_af(0, 40); self.rd_af(2, 48)
        a(f"v_and_b32 v5, 31, v{vLANE}")
        a(f"s_lshl_b32 s{sT2}, s{sWAVE}, 5")
        a(f"v_add_u32 v5, s{sT2}, v5")
        a(f"v_lshrrev_b32 v6, 5, v{vLANE}")
        a(f"v_mul_u32_u24 v27, {PHI_ROW}, v5")
        a("v_mul_u32_u24 v7, 40, v6")
        a("v_add_u32 v27, v27, v7")
        a(f"v_mul_u32_u24 v28, {V_ROW}, v5")
        a("v_lshl_add_u32 v28, v6, 3, v28")
        a(f"v_add_u32 v28, {L_V}, v28")
        self.cvtP(P, 0)
        a("s_waitcnt lgkmcnt(0)")
        self.feat_mfma(D[0], P, 0, 40)
        self.feat_mfma(D[1], P, 1, 48)
        self.rd_af(4, 40); self.rd_af(6, 48)
        a("s_barrier")
        self.ts(11)
        for t in range(5):
            for i in range(2):
                G_ = 2 * t + i
                r = ACC + 16 * t + 8 + 4 * i
                for e in range(4): a(f"v_mul_f32 v{r+e}, v{r+e}, v{vRSTD}")
                a(f"v_cvt_pk_bf16_f32 v{162+2*(G_&1)}, v{r}, v{r+1}")
                a(f"v_cvt_pk_bf16_f32 v{163+2*(G_&1)}, v{r+2}, v{r+3}")
                a(f"ds_write_b64 v28, v[{162+2*(G_&1)}:{163+2*(G_&1)}] offset:{16*G_}")
        for p in range(4):
            self.softmax10(D[p & 1], E, PK, 25, T)
            if p < 2:
                a("s_waitcnt lgkmcnt(0)")
                self.feat_mfma(D[p & 1], P, p + 2, 40 + 8 * p)
            for i in range(5):
                a(f"ds_write_b64 v27, v[{PK+2*i}:{PK+2*i+1}] offset:{p*80 + i*8}")
        a("s_waitcnt lgkmcnt(0)")
        a("s_barrier")
        self.ts(3)
        a(f"s_lshr_b32 s{sT2}, s{sWAVE}, 1")
        a(f"s_and_b32 s{sT3}, s{sWAVE}, 1")
        a(f"v_lshrrev_b32 v5, 4, v{vLANE}")
        a("v_and_b32 v6, 1, v5")
        a("v_lshrrev_b32 v5, 1, v5")
        a(f"v_bfe_u32 v7, v{vLANE}, 2, 2")
        a("v_lshl_add_u32 v5, v5, 3, v7")
        a(f"v_and_b32 v7, 3, v{vLANE}")
        a(f"s_mul_i32 s{sT4}, s{sT2}, 40")
        a("v_lshlrev_b32 v8, 3, v7")
        a(f"v_add_u32 v8, s{sT4}, v8")
        a(f"s_add_u32 s{sT5}, s{sT4}, 32")
        a(f"v_mov_b32 v9, s{sT5}")
        a("v_cmp_eq_u32 vcc, 0, v6")
        a("v_cndmask_b32 v8, v9, v8, vcc")
        a(f"v_mul_u32_u24 v9, {V_ROW}, v5")
        a("v_add_u32 v8, v8, v9")
        a(f"v_add_u32 v32, {L_V}, v8")
        a("v_cmp_ne_u32 vcc, 0, v7")
        a("v_cndmask_b32 v2, 0, v6, vcc")
        a("v_cmp_eq_u32 vcc, 0, v2")
        a(f"v_mov_b32 v3, {L_ONES}")
        a("v_cndmask_b32 v32, v3, v32, vcc")
        a(f"v_mov_b32 v3, {4*V_ROW}")
        a("v_cndmask_b32 v35, 0, v3, vcc")
        a(f"s_lshl_b32 s{sT5}, s{sT3}, 3")
        a("v_lshl_add_u32 v8, v6, 2, v7")
        a(f"v_add_u32 v8, s{sT5}, v8")
        a("v_min_u32 v8, 9, v8")
        a("v_lshlrev_b32 v8, 3, v8")
        a(f"s_mul_i32 s{sT4}, s{sT2}, 80")
        a(f"v_add_u32 v8, s{sT4}, v8")
        a(f"v_mul_u32_u24 v9, {PHI_ROW}, v5")
        a("v_add_u32 v33, v8, v9")
        a(f"v_add_u32 v34, {8*16*PHI_ROW}, v33")
        KD = 104
        def rd(s_, buf):
            r = 64 + 8 * buf
            a(f"ds_read_b64_tr_b16 v[{r}:{r+1}], v32")
            a("v_add_u32 v32, v32, v35")
            a(f"ds_read_b64_tr_b16 v[{r+2}:{r+3}], v32")
            a("v_lshl_add_u32 v32, v35, 1, v32")
            a("v_add_u32 v32, v32, v35")
            bb, so = (33, s_) if s_ < 8 else (34, s_ - 8)
            a(f"ds_read_b64_tr_b16 v[{r+4}:{r+5}], v{bb} offset:{so*16*PHI_ROW}")
            a(f"ds_read_b64_tr_b16 v[{r+6}:{r+7}], v{bb} offset:{so*16*PHI_ROW + 4*PHI_ROW}")
        rd(0, 0); rd(1, 1); rd(2, 2)
        for s_ in range(16):
            buf = s_ % 3
            r = 64 + 8 * buf
            n = 4 * min(2, 15 - s_)
            a(f"s_waitcnt lgkmcnt({n})")
            c = "0" if s_ == 0 else f"v[{KD}:{KD+15}]"
            a(f"v_mfma_f32_32x32x16_bf16 v[{KD}:{KD+15}], v[{r}:{r+3}], v[{r+4}:{r+7}], {c}")
            if s_ + 3 < 16: rd(s_ + 3, buf)
        a(f"v_and_b32 v5, 31, v{vLANE}")
        a(f"s_lshl_b32 s{sT5}, s{sT3}, 5")
        a(f"v_add_u32 v5, s{sT5}, v5")
        a(f"v_lshrrev_b32 v6, 5, v{vLANE}")
        a("v_mul_u32_u24 v7, 160, v6")
        a("v_add_u32 v7, v7, v5")
        a("v_lshlrev_b32 v7, 2, v7")
        a(f"v_mov_b32 v8, {OOB}")
        a("v_cmp_gt_u32 vcc, 40, v5")
        a("v_cndmask_b32 v7, v8, v7, vcc")
        a("v_cmp_eq_u32 vcc, 0, v6")
        a("v_cndmask_b32 v9, v8, v7, vcc")
        a(f"s_lshl_b32 s{sT4}, s{sJOB}, 2")
        a(f"s_add_u32 s{sT4}, s{sT4}, s{sT2}")
        a(f"s_lshl_b32 s{sT4}, s{sT4}, 12")
        a(f"s_add_u32 s{sT4}, s{sT4}, {KV_OFF}")
        for r in range(12):
            off = (8 * (r >> 2) + (r & 3)) * 160
            v = 7 if r <= 8 else 9
            a(f"buffer_atomic_add_f32 v{KD+r}, v{v}, {srd(sWS)}, s{sT4} offen offset:{off}")
        a("s_barrier")
        self.p2_pref_begin()
        a(f"s_cmp_eq_u32 s{sP2OK}, 0")
        a(f"s_cselect_b32 s{sA}, s{sOOB}, s{sA}")
        NEARLY = 4
        for i in range(NEARLY): self.p2_pref(i)
        a(f"s_waitcnt vmcnt({NEARLY})")
        a("s_barrier")
        a(f"s_lshl_b32 s{sT2}, s{sJOB}, 8")
        a(f"s_add_u32 s{sT2}, s{sT2}, {CNT_OFF + 16*256}")
        self.arrive()
        self.ts(4)
        for i in range(NEARLY, 20): self.p2_pref(i)

    def epi_q(self):
        a = self.a
        P0, P1 = 60, 82
        D = [104, 120]
        E = 136
        T = 32
        PH = 160
        a(f"v_mul_f32 v25, {f2u(LOG2E):#x}, v{vRSTD}")
        a(f"v_lshlrev_b32 v30, 4, v{vLANE}")
        a(f"v_add_u32 v30, {L_WPHI}, v30")
        self.rd_af(0, 40); self.rd_af(2, 48)
        self.cvtP(P0, 0)
        self.cvtP(P1, 1)
        a("s_waitcnt lgkmcnt(0)")
        self.feat_mfma(D[0], P0, 0, 40)
        self.feat_mfma(D[1], P0, 1, 48)
        for h in range(8):
            hn = h + 2
            if hn < 8: self.rd_af((hn >> 2) * 8 + 2 * (hn & 3), 40 + 8 * (hn & 1))
            self.softmax10(D[h & 1], E, PH + 12 * h, 25, T)
            a(f"v_mov_b32 v{PH+12*h+10}, 0"); a(f"v_mov_b32 v{PH+12*h+11}, 0")
            if hn < 8:
                a("s_waitcnt lgkmcnt(0)")
                self.feat_mfma(D[h & 1], P0 if hn < 4 else P1, hn & 3, 40 + 8 * (hn & 1))
        self.ts(3)
        a(f"v_bfe_u32 v2, v{vLANE}, 3, 2")
        a(f"v_and_b32 v3, 3, v{vLANE}")
        a("v_lshl_add_u32 v2, v2, 2, v3")
        a(f"v_bfe_u32 v3, v{vLANE}, 2, 1")
        a("v_lshl_add_u32 v3, v2, 1, v3")
        a("v_mov_b32 v4, 20")
        a("v_cmp_eq_u32 vcc, 10, v2")
        a("v_cndmask_b32 v3, v3, v4, vcc")
        a("v_mul_u32_u24 v3, 160, v3")
        a(f"v_lshrrev_b32 v4, 5, v{vLANE}")
        a("v_mul_u32_u24 v4, 80, v4")
        a("v_add_u32 v3, v3, v4")
        a(f"v_mov_b32 v4, {OOB}")
        a("v_cmp_gt_u32 vcc, 11, v2")
        a("v_cndmask_b32 v38, v4, v3, vcc")
        a(f"v_lshlrev_b32 v39, 4, v{vLANE}")
        a(f"s_cmp_eq_u32 s{sWAVE}, 0")
        a("s_cbranch_scc0 L_q_nopoll")
        a(f"s_lshl_b32 s{sT2}, s{sJOB}, 9")
        a(f"s_add_u32 s{sT2}, s{sT2}, {CNT_OFF + 16*256}")
        a(f"s_add_u32 s{sT3}, s{sT2}, 256")
        self.poll2(sT2, sT3, 8)
        a.label("L_q_nopoll")
        a("s_barrier")
        self.ts(4)
        a(f"s_lshl_b32 s{sT4}, s{sJOB}, 3")
        a(f"s_add_u32 s{sT4}, s{sT4}, s{sWAVE}")
        a(f"s_lshl_b32 s{sT4}, s{sT4}, 12")
        a(f"s_add_u32 s{sT4}, s{sT4}, {KV_OFF}")
        for s_ in range(3):
            a(f"buffer_load_dwordx4 v[{104+8*s_}:{107+8*s_}], v38, {srd(sWS)}, s{sT4} offen offset:{32*s_} sc1")
            a(f"buffer_load_dwordx4 v[{108+8*s_}:{111+8*s_}], v38, {srd(sWS)}, s{sT4} offen offset:{32*s_+16} sc1")
        a(f"s_mul_i32 s{sT5}, s{sWAVE}, 3072")
        a(f"v_add_u32 v5, s{sT5}, v39")
        for s_ in range(3):
            a(f"s_waitcnt vmcnt({4-2*s_})")
            for d in range(4):
                a(f"v_cvt_pk_bf16_f32 v{136+4*s_+d}, v{104+8*s_+2*d}, v{105+8*s_+2*d}")
            a(f"ds_write_b128 v5, v[{136+4*s_}:{139+4*s_}] offset:{L_KVA + s_*1024}")
        a("s_waitcnt lgkmcnt(0)")
        a("s_barrier")
        OF = 60
        def rdA(h):
            b = 104 + 12 * (h & 1)
            for s_ in range(3): a(f"ds_read_b128 v[{b+4*s_}:{b+4*s_+3}], v39 offset:{L_KVA + (h*3+s_)*1024}")
        OD = [128, 144]
        a(f"s_lshl_b32 s{sT2}, s{sRB}, 3")
        a(f"s_add_u32 s{sT2}, s{sT2}, s{sWAVE}")
        a(f"s_mul_i32 s{sT2}, s{sT2}, 136")
        a(f"s_mul_i32 s{sT3}, s{sJOB}, 10")
        a(f"s_add_u32 s{sT2}, s{sT2}, s{sT3}")
        a(f"s_add_u32 s{sT2}, s{sT2}, 96")
        a(f"s_lshl_b32 s{sT2}, s{sT2}, 10")
        rdA(0)
        stored = 0
        def stores(upto):
            nonlocal stored
            while stored < upto:
                f = stored
                if f and f % 4 == 0: a(f"s_add_u32 s{sT2}, s{sT2}, 4096")
                a(f"buffer_store_dwordx4 v[{OF+4*f}:{OF+4*f+3}], v39, {srd(sWS)}, s{sT2} offen offset:{(f&3)*1024} sc1")
                stored += 1
        for h in range(8):
            if h < 7: rdA(h + 1)
            b = 104 + 12 * (h & 1)
            a(f"s_waitcnt lgkmcnt({3 if h < 7 else 0})")
            d = OD[h & 1]
            for s_ in range(3):
                c = "0" if s_ == 0 else f"v[{d}:{d+15}]"
                a(f"v_mfma_f32_32x32x16_bf16 v[{d}:{d+15}], v[{b+4*s_}:{b+4*s_+3}], v[{PH+12*h+4*s_}:{PH+12*h+4*s_+3}], {c}")
            if h >= 1:
                self.o_finish(OD[(h - 1) & 1], OF + 5 * (h - 1))
                stores((5 * h) // 4)
        self.o_finish(OD[7 & 1], OF + 35)
        stores(10)
        a("s_waitcnt vmcnt(0)")
        a("s_barrier")
        a(f"s_lshl_b32 s{sT2}, s{sRB}, 8")
        a(f"s_add_u32 s{sT2}, s{sT2}, {CNT_OFF + 8*256}")
        self.arrive()
        self.ts(5)

    def o_finish(self, d, dst):
        a = self.a
        a(f"v_add_f32 v37, {f2u(1e-6):#x}, v{d+10}")
        a("v_rcp_f32 v37, v37")
        for i in range(10): a(f"v_mul_f32 v{d+i}, v{d+i}, v37")
        for i in range(5): a(f"v_cvt_pk_bf16_f32 v{dst+i}, v{d+2*i}, v{d+2*i+1}")

    def p2_main(self):
        a = self.a
        DEPTH = self.o.get("depth", 16)
        a(f"s_cmp_eq_u32 s{sP2OK}, 0")
        a("s_cbranch_scc1 L_end")
        self.ts(6)
        a(f"s_mul_i32 s{sT2}, s{sRB2}, 96")
        a(f"s_lshr_b32 s{sC}, s{sT2}, 8")
        a(f"s_add_u32 s{sT2}, s{sT2}, 95")
        a(f"s_min_u32 s{sT2}, s{sT2}, 2047")
        a(f"s_lshr_b32 s{sD}, s{sT2}, 8")
        a(f"s_cmp_ge_u32 s{sWAVE}, 6")
        a("s_cbranch_scc1 L_p2_loader")
        HB, WB, PA, XR = 128, 64, 192, 80
        vA0, vA1, vL16, vRES = 10, 11, 12, 13
        a(f"s_cmp_ge_u32 s{sWAVE}, 3")
        a(f"s_cselect_b32 s{sKH}, 1, 0")
        a(f"s_mul_i32 s{sT3}, s{sKH}, 3")
        a(f"s_sub_u32 s{sTT}, s{sWAVE}, s{sT3}")
        a(f"s_mul_i32 s{sTTG}, s{sRB2}, 3")
        a(f"s_add_u32 s{sTTG}, s{sTTG}, s{sTT}")
        self.build_srd(sX, PWS, HO_SIZE)
        self.build_srd(sW, PX, 2621440)
        a(f"s_mul_i32 s{sT5}, s{sTTG}, 136")
        a(f"s_mul_i32 s{sXOFF}, s{sKH}, 48")
        a(f"s_add_u32 s{sXOFF}, s{sXOFF}, s{sT5}")
        a(f"s_lshl_b32 s{sXOFF}, s{sXOFF}, 10")
        a(f"s_mul_i32 s{sWOFF}, s{sKH}, 20")
        a(f"s_add_u32 s{sWOFF}, s{sWOFF}, s{sT5}")
        a(f"s_add_u32 s{sWOFF}, s{sWOFF}, 96")
        a(f"s_lshl_b32 s{sWOFF}, s{sWOFF}, 10")
        a(f"v_lshlrev_b32 v{vL16}, 4, v{vLANE}")
        a(f"v_and_b32 v2, 31, v{vLANE}")
        a("v_mul_u32_u24 v2, 1280, v2")
        a(f"v_lshrrev_b32 v3, 5, v{vLANE}")
        a(f"v_lshl_add_u32 v{vRES}, v3, 3, v2")
        a(f"s_mul_i32 s{sT5}, s{sTTG}, {32*1280}")
        a(f"s_lshl_b32 s{sTMP}, s{sCB}, 7")
        a(f"s_add_u32 s{sT5}, s{sT5}, s{sTMP}")
        a(f"s_lshl_b32 s{sTMP}, s{sKH}, 6")
        a(f"s_add_u32 s{sWCH}, s{sT5}, s{sTMP}")
        for q in range(4):
            a(f"buffer_load_dwordx2 v[{XR+2*q}:{XR+2*q+1}], v{vRES}, {srd(sW)}, s{sWCH} offen offset:{q*16}")
        a(f"v_lshrrev_b32 v2, 5, v{vLANE}")
        a(f"v_bfe_u32 v3, v{vLANE}, 2, 2")
        a("v_lshl_add_u32 v2, v2, 3, v3")
        a("v_lshlrev_b32 v2, 7, v2")
        a(f"v_bfe_u32 v4, v{vLANE}, 4, 1")
        a("v_lshlrev_b32 v4, 1, v4")
        a(f"v_bfe_u32 v5, v{vLANE}, 1, 1")
        a("v_add_u32 v4, v4, v5")
        a("v_bfe_u32 v5, v3, 1, 1")
        a("v_lshlrev_b32 v5, 2, v5")
        a("v_xor_b32 v4, v4, v5")
        a("v_lshl_add_u32 v2, v4, 4, v2")
        a(f"v_and_b32 v5, 1, v{vLANE}")
        a("v_lshl_add_u32 v2, v5, 3, v2")
        a(f"s_lshl_b32 s{sTMP}, s{sKH}, 13")
        a(f"v_add_u32 v{vA0}, s{sTMP}, v2")
        a(f"v_xor_b32 v{vA1}, 64, v{vA0}")
        for i in range(32): a(f"v_mov_b32 v{PA+i}, 0")
        a(f"s_cmp_eq_u32 s{sWAVE}, 0")
        a("s_cbranch_scc0 L_p2_nopoll")
        a(f"s_lshl_b32 s{sT2}, s{sC}, 8")
        a(f"s_add_u32 s{sT2}, s{sT2}, {CNT_OFF}")
        a(f"s_lshl_b32 s{sT3}, s{sD}, 8")
        a(f"s_add_u32 s{sT3}, s{sT3}, {CNT_OFF}")
        self.poll2(sT2, sT3, 20)
        a.label("L_p2_nopoll")
        a("s_waitcnt vmcnt(0)")
        a("s_barrier")
        self.ts(7)
        issued = [0]
        def hload(n):
            assert n == issued[0]
            issued[0] += 1
            if n < 48: base, k = sXOFF, n
            else: base, k = sWOFF, n - 48
            if k and k % 4 == 0: a(f"s_add_u32 s{base}, s{base}, 4096")
            b = HB + 4 * (n % DEPTH)
            a(f"buffer_load_dwordx4 v[{b}:{b+3}], v{vL16}, {srd(sX)}, s{base} offen offset:{(k&3)*1024}" + ("" if self.o.get("p2plain") else " sc1"))
        for n in range(DEPTH): hload(n)
        cur = {"slot": 0}
        def wread(n):
            if n >= 68: return
            slot = (n >> 2) % 10
            if slot != cur["slot"]:
                d = (slot - cur["slot"]) * 16384
                a(f"v_add_u32 v{vA0}, {d & 0xffffffff:#x}, v{vA0}")
                a(f"v_add_u32 v{vA1}, {d & 0xffffffff:#x}, v{vA1}")
                cur["slot"] = slot
            for nt in range(2):
                b = WB + 8 * (n & 1) + 4 * nt
                va = vA0 if nt == 0 else vA1
                a(f"ds_read_b64_tr_b16 v[{b}:{b+1}], v{va} offset:{(n&3)*2048}")
                a(f"ds_read_b64_tr_b16 v[{b+2}:{b+3}], v{va} offset:{(n&3)*2048 + 512}")
        wread(0); wread(1)
        OST = 40
        for n in range(68):
            if n and n % 8 == 0 and n <= 56:
                a("s_barrier")
            if n == OST:
                while issued[0] < min(68, n + DEPTH) and issued[0] - DEPTH < n: hload(issued[0])
            nv = issued[0] - (n + 1)
            nl = 4 if n < 67 else 0
            a(f"s_waitcnt vmcnt({min(nv, 63)}) lgkmcnt({nl})")
            hb = HB + 4 * (n % DEPTH)
            for nt in range(2):
                b = WB + 8 * (n & 1) + 4 * nt
                a(f"v_mfma_f32_32x32x16_bf16 v[{PA+16*nt}:{PA+16*nt+15}], v[{b}:{b+3}], v[{hb}:{hb+3}], v[{PA+16*nt}:{PA+16*nt+15}]")
            m = n + DEPTH
            if m < 68 and m == issued[0] and (m < 48 or n >= OST): hload(m)
            wread(n + 2)
        assert issued[0] == 68
        self.ts(8)
        a("s_barrier")
        a(f"s_lshl_b32 s{sT2}, s{sTT}, 1")
        a(f"s_add_u32 s{sT2}, s{sT2}, s{sKH}")
        a(f"s_lshl_b32 s{sT3}, s{sT2}, 12")
        a(f"s_xor_b32 s{sT4}, s{sT3}, 4096")
        a(f"v_add_u32 v2, s{sT3}, v{vL16}")
        a(f"v_add_u32 v3, s{sT4}, v{vL16}")
        a(f"s_cmp_eq_u32 s{sKH}, 0")
        a("s_cbranch_scc0 L_p2_kh1")
        for q in range(4): a(f"ds_write_b128 v2, v[{PA+16+4*q}:{PA+16+4*q+3}] offset:{q*1024}")
        a("s_branch L_p2_x")
        a.label("L_p2_kh1")
        for q in range(4): a(f"ds_write_b128 v2, v[{PA+4*q}:{PA+4*q+3}] offset:{q*1024}")
        for i in range(16): a(f"v_mov_b32 v{PA+i}, v{PA+16+i}")
        a.label("L_p2_x")
        self.build_srd(sT0, POUT, 2621440)
        a(f"v_and_b32 v4, 31, v{vLANE}")
        a("v_mul_u32_u24 v4, 1280, v4")
        a(f"v_lshrrev_b32 v5, 5, v{vLANE}")
        a("v_lshl_add_u32 v4, v5, 4, v4")
        for q in range(4):
            for h2 in range(2):
                x = XR + 2 * q + h2
                a(f"v_lshlrev_b32 v6, 16, v{x}")
                a(f"v_and_b32 v7, 0xffff0000, v{x}")
                a(f"v_add_f32 v{PA+4*q+2*h2}, v{PA+4*q+2*h2}, v6")
                a(f"v_add_f32 v{PA+4*q+2*h2+1}, v{PA+4*q+2*h2+1}, v7")
        a("s_waitcnt lgkmcnt(0)")
        a("s_barrier")
        for q in range(4): a(f"ds_read_b128 v[{PA+16+4*q}:{PA+16+4*q+3}], v3 offset:{q*1024}")
        O = 64
        for q in range(4):
            a(f"s_waitcnt lgkmcnt({3-q})")
            for i in range(4): a(f"v_add_f32 v{PA+4*q+i}, v{PA+4*q+i}, v{PA+16+4*q+i}")
            a(f"v_cvt_pk_bf16_f32 v{O+2*q}, v{PA+4*q}, v{PA+4*q+1}")
            a(f"v_cvt_pk_bf16_f32 v{O+2*q+1}, v{PA+4*q+2}, v{PA+4*q+3}")
        for pr in range(2):
            a(f"v_permlane32_swap_b32 v{O+4*pr}, v{O+4*pr+2}")
            a(f"v_permlane32_swap_b32 v{O+4*pr+1}, v{O+4*pr+3}")
        for pr in range(2):
            a(f"buffer_store_dwordx4 v[{O+4*pr}:{O+4*pr+3}], v4, {srd(sT0)}, s{sWCH} offen offset:{pr*32}")
        self.ts(9)
        a("s_branch L_end")
        a.label("L_p2_loader")
        a(f"s_sub_u32 s{sT2}, s{sWAVE}, 6")
        a(f"s_lshl_b32 s{sXDST}, s{sT2}, 13")
        a(f"s_lshl_b32 s{sXOFF}, s{sCB}, 7")
        a(f"s_mul_i32 s{sT3}, s{sT2}, {48*16*1280}")
        a(f"s_add_u32 s{sWOFF}, s{sXOFF}, s{sT3}")
        a(f"s_mul_i32 s{sT3}, s{sT2}, {20*16*1280}")
        a(f"s_add_u32 s{sWDST}, s{sXOFF}, s{sT3}")
        a("s_waitcnt vmcnt(0)")
        a("s_barrier")
        def refill(st):
            for q in range(8):
                a(f"s_add_u32 m0, s{sXDST}, {(st % 10)*16384 + q*1024}")
                if st < 12:
                    a(f"s_add_u32 s{sT5}, s{sWOFF}, {(4*st + (q>>1))*16*1280}")
                    a(f"buffer_load_dwordx4 v{vP2+(q&1)}, {srd(sT0)}, s{sT5} offen lds")
                else:
                    a(f"s_add_u32 s{sT5}, s{sWDST}, {(4*(st-12) + (q>>1))*16*1280}")
                    a(f"buffer_load_dwordx4 v{vP2+2+(q&1)}, {srd(sT1)}, s{sT5} offen lds")
        a("s_barrier"); refill(10); refill(11)
        a("s_barrier"); refill(12); refill(13)
        a("s_barrier"); refill(14); refill(15)
        a("s_waitcnt vmcnt(32)")
        a("s_barrier"); refill(16)
        if self.o.get("noopoll"): a("s_branch L_p2_nopo")
        a(f"s_cmp_eq_u32 s{sWAVE}, 6")
        a("s_cbranch_scc0 L_p2_nopo")
        a(f"s_lshl_b32 s{sT2}, s{sC}, 8")
        a(f"s_add_u32 s{sT2}, s{sT2}, {CNT_OFF + 8*256}")
        a(f"s_lshl_b32 s{sT3}, s{sD}, 8")
        a(f"s_add_u32 s{sT3}, s{sT3}, {CNT_OFF + 8*256}")
        self.poll2(sT2, sT3, 4)
        a.label("L_p2_nopo")
        a("s_waitcnt vmcnt(0)")
        a("s_barrier")
        a("s_barrier")
        a("s_barrier")
        a("s_barrier")
        a("s_barrier")
        a("s_branch L_end")

    def gen(self):
        a = self.a
        self.prologue()
        self.mainloop()
        self.ts(2)
        self.mean_corr()
        a(f"s_cmp_eq_u32 s{sTYPE}, 2")
        a("s_cbranch_scc1 L_ffn")
        a(f"s_cmp_eq_u32 s{sTYPE}, 1")
        a("s_cbranch_scc1 L_q")
        self.epi_kv()
        a("s_branch L_p2")
        a.label("L_q")
        self.epi_q()
        a("s_branch L_end")
        a.label("L_ffn")
        self.epi_ffn()
        a.label("L_p2")
        if self.o.get("nop2"):
            a("s_branch L_end")
        self.p2_main()
        lines = a.l + ["s_branch L_end"] + self.ool.l + ["L_end:", "s_endpgm"]
        lines, added = pad_hazards(lines)
        body = "\n".join(("    " + l if not l.endswith(":") else l) for l in lines)
        hdr = open("cdna_kernels/" + KNAME[:-7] + ".s.ref").read().split("; Override launch geometry")[0]
        txt = hdr + f"""; Fused single-launch kernel: LN + QKV/FFN GEMM + hedgehog linear attention + output GEMM (generated by my own script).
; @launch grid=(256,1,1) block=(512,1,1) lds={LDS_TOTAL}
.amdgcn_target "amdgcn-amd-amdhsa--gfx950"
.text
.globl {KNAME}
.p2align 8
.type {KNAME},@function
{KNAME}:
{body}
.section .rodata,"a"
.p2align 6
.amdhsa_kernel {KNAME}
  .amdhsa_next_free_vgpr 256
  .amdhsa_next_free_sgpr 102
  .amdhsa_accum_offset 256
  .amdhsa_group_segment_fixed_size 0
  .amdhsa_kernarg_size 88
  .amdhsa_user_sgpr_count 2
  .amdhsa_user_sgpr_kernarg_segment_ptr 1
  .amdhsa_system_sgpr_workgroup_id_x 1
.end_amdhsa_kernel
"""
        return txt, added

if __name__ == "__main__":
    import argparse
    ap = argparse.ArgumentParser()
    ap.add_argument("-o", default="k.s")
    for f in ("dev", "ts", "nop2", "p2plain", "noopoll", "nowarm"): ap.add_argument("--" + f, action="store_true")
    ap.add_argument("--tsset", default=None)
    ap.add_argument("--depth", type=int, default=16)
    args = ap.parse_args()
    o = dict(dev=args.dev or args.ts, ts=args.ts, nop2=args.nop2, p2plain=args.p2plain, noopoll=args.noopoll, nowarm=args.nowarm, depth=args.depth)
    if args.tsset: o["tsset"] = set(int(x) for x in args.tsset.split(","))
    g = G(o)
    txt, added = g.gen()
    open(args.o, "w").write(txt)
    print("written", args.o, "lines", txt.count("\n"), "hazard pad states", added)
```

```python
import sys, struct
sys.path.insert(0, "dev")
from asmlib import Asm, pad_hazards

KNAME = "parallel_sum__linear_kernel_hedgehog__swiglu_ffn__prompt_kernel"

HO_TT = 136 * 1024
HO_SIZE = 64 * HO_TT
KV_OFF = HO_SIZE
KV_SIZE = 32 * 4096
ST_OFF = KV_OFF + KV_SIZE
ST_SIZE = 2048 * 8
CNT_OFF = ST_OFF + ST_SIZE
CSP_OFF = CNT_OFF + 24 * 256
CSP_SIZE = 32 * 8 * 640
WS_SIZE = CSP_OFF + CSP_SIZE
DBG_OFF = WS_SIZE
DBG_SIZE = 256 * 8 * 64 + 256 * 8 * 256 + 4096
OOB = 0x40000000
LOG2E = 1.4426950408889634

XST = 32768
WARR = 10240
WA1 = WARR + 128
WST = 2 * WARR + 128
WBASE = 3 * XST
L_ZERO = WBASE + 3 * WST
L_ONES = L_ZERO + 16
L_CSP = L_ZERO + 128
L_DUMMY = L_CSP + 2560
LDS_TOTAL = 163840
assert L_DUMMY + 1024 == LDS_TOTAL
L_WPHI = 122880
L_PHI = 0
PHI_ROW = 320
L_V = 81920
V_ROW = 160
L_KVA = 0

PX, PQKV, PPHI, PWO, PBX, PWG, PWU, PWD, POUT, PDBG, PWS = 4, 6, 8, 10, 12, 14, 16, 18, 20, 22, 24
sX, sW, sWS, sDBG, sT0, sT1 = 28, 32, 36, 40, 44, 48
sWAVE, sRB, sTYPE, sJOB, sJIDX, sC = 52, 53, 54, 55, 56, 57
sXOFF, sXDST, sTMP, sWOFF, sWDST = 58, 59, 60, 61, 62
sSTRIDE, sWSTp, sWSTm, sXSTp, sXSTm, sMASK = 63, 64, 65, 66, 67, 68
sWEND, sXEND, sWBEG, sXBEG, sRST, sDW, sDX, sWCH = 69, 70, 71, 72, 73, 74, 75, 76
sW3F, sT2, sT3, sT4, sT5, sOOB, sSPEC = 77, 78, 79, 80, 81, 82, 83
sKH, sTT, sXCD, sTTG = 84, 85, 86, 87
sRB2, sCB = 88, 89
sTS = 90
sP2OK = 93
sA, sT0F, sE, sD = 94, 95, 96, 97
sENT = 100
sTCH = 12
sTCO, sTCS, sTCB, sTCN = 16, 17, 6, 7
vTCH = 9 + 12
vTCD = 123

def srd(r): return f"s[{r}:{r+3}]"
def f2u(x): return struct.unpack("<I", struct.pack("<f", x))[0]

vLANE = 1
vXA = [10, 11, 12, 13]
vWA = 14
vXS = [16, 17]
vWS = [18, 19, 20]
vSTAT = 22
vRSTD = 24
vPOLL = 24
AP = 32
WPHI = 52
BP = 60
CSL = 64
vP2 = 100
WRAW = 104
XF = [128, 132]
WF = 136
ACC = 176

class G:
    def __init__(self, opts):
        self.a = Asm()
        self.o = opts
        self.ool = Asm()
        self.ool._n = 100000

    def build_srd(self, r, ptr, nbytes, a=None):
        a = a or self.a
        a(f"s_mov_b32 s{r}, s{ptr}")
        a(f"s_mov_b32 s{r+1}, s{ptr+1}")
        a(f"s_mov_b32 s{r+2}, {nbytes}")
        a(f"s_mov_b32 s{r+3}, 0x00020000")

    def ts(self, idx, a=None, entry=False, src=None):
        if not self.o.get("ts"): return
        if self.o.get("tsset") is not None and idx not in self.o["tsset"]: return
        a = a or self.a
        if src is not None:
            a("s_waitcnt lgkmcnt(0)")
            a(f"s_mov_b32 s{sTS}, s{src}")
        elif entry: a(f"s_mov_b32 s{sTS}, s{sENT}")
        else: a(f"s_memrealtime s[{sTS}:{sTS+1}]")
        a(f"s_lshl_b32 s{sTS+2}, s2, 3")
        a(f"s_add_u32 s{sTS+2}, s{sTS+2}, s{sWAVE}")
        a(f"s_lshl_b32 s{sTS+2}, s{sTS+2}, 6")
        a(f"s_add_u32 s{sTS+2}, s{sTS+2}, {DBG_OFF + idx*4}")
        a(f"v_mov_b32 v3, {OOB}")
        a(f"v_cmp_eq_u32 vcc, 0, v{vLANE}")
        a(f"v_cndmask_b32 v3, v3, v{vLANE}, vcc")
        a("s_waitcnt lgkmcnt(0)")
        a(f"v_mov_b32 v2, s{sTS}")
        a(f"buffer_store_dword v2, v3, {srd(sWS)}, s{sTS+2} offen")
    def tsq(self, k):
        self.a(f"s_memrealtime s[{2*(k-20)+4}:{2*(k-20)+5}]")
    def nts(self, idxs):
        if not self.o.get("ts"): return 0
        return sum(1 for i in idxs if self.o.get("tsset") is None or i in self.o["tsset"])

    def xlane_sum(self, v, t, a=None):
        a = a or self.a
        a(f"v_mov_b32 v{t}, v{v}")
        a(f"v_permlane16_swap_b32 v{v}, v{t}")
        a(f"v_add_f32 v{v}, v{v}, v{t}")
        a(f"v_mov_b32 v{t}, v{v}")
        a(f"v_permlane32_swap_b32 v{v}, v{t}")
        a(f"v_add_f32 v{v}, v{v}, v{t}")
    def wave_sum(self, v, t):
        a = self.a
        for r in (8, 4, 2, 1):
            a(f"v_add_f32_dpp v{v}, v{v}, v{v} row_ror:{r} row_mask:0xf bank_mask:0xf")
        self.xlane_sum(v, t)

    def lane0_off(self, dst, a=None):
        a = a or self.a
        a(f"v_mov_b32 v{dst}, {OOB}")
        a(f"v_cmp_eq_u32 vcc, 0, v{vLANE}")
        a(f"v_cndmask_b32 v{dst}, v{dst}, v{vLANE}, vcc")

    def prologue(self):
        a = self.a
        if self.o.get("ts"): a(f"s_memrealtime s[{sENT}:{sENT+1}]")
        a(f"s_load_dwordx16 s[4:19], s[0:1], 0")
        a(f"s_load_dwordx4 s[20:23], s[0:1], 64")
        a(f"s_load_dwordx2 s[24:25], s[0:1], 80")
        a("s_cmp_ge_u32 s2, 256")
        a("s_cbranch_scc1 L_end")
        a("v_lshrrev_b32 v2, 6, v0")
        a(f"v_and_b32 v{vLANE}, 63, v0")
        a(f"v_readfirstlane_b32 s{sWAVE}, v2")
        a(f"s_and_b32 s{sXCD}, s2, 7")
        a(f"s_lshr_b32 s{sT2}, s2, 3")
        a(f"s_and_b32 s{sRB}, s{sXCD}, 1")
        a(f"s_lshl_b32 s{sRB}, s{sRB}, 2")
        a(f"s_and_b32 s{sT3}, s{sT2}, 3")
        a(f"s_add_u32 s{sRB}, s{sRB}, s{sT3}")
        a(f"s_lshr_b32 s{sD}, s{sT2}, 2")
        a(f"s_lshr_b32 s{sE}, s{sXCD}, 1")
        a(f"s_lshl_b32 s{sJIDX}, s{sE}, 3")
        a(f"s_add_u32 s{sJIDX}, s{sJIDX}, s{sD}")
        a(f"s_mul_i32 s{sT3}, s{sE}, 5")
        a(f"s_add_u32 s{sT3}, s{sT3}, s{sD}")
        a(f"s_sub_u32 s{sJOB}, s{sT3}, 3")
        a(f"s_mov_b32 s{sTYPE}, 2")
        a(f"s_cmp_eq_u32 s{sD}, 2")
        a(f"s_cselect_b32 s{sTYPE}, 1, s{sTYPE}")
        a(f"s_cselect_b32 s{sJOB}, s{sE}, s{sJOB}")
        a(f"s_lshl_b32 s{sT3}, s{sE}, 1")
        a(f"s_add_u32 s{sT3}, s{sT3}, s{sD}")
        a(f"s_cmp_lt_u32 s{sD}, 2")
        a(f"s_cselect_b32 s{sTYPE}, 0, s{sTYPE}")
        a(f"s_cselect_b32 s{sJOB}, s{sT3}, s{sJOB}")
        a(f"s_lshr_b32 s{sA}, s{sWAVE}, 2")
        a(f"s_mul_i32 s{sT3}, s{sJOB}, 5")
        a(f"s_lshl_b32 s{sT4}, s{sJOB}, 2")
        a(f"s_add_u32 s{sT4}, s{sT4}, 16")
        a(f"s_cmp_lt_u32 s{sJOB}, 16")
        a(f"s_cselect_b32 s{sT0F}, s{sT3}, s{sT4}")
        a(f"s_lshl_b32 s{sWOFF}, s{sT0F}, 5")
        a(f"s_mul_i32 s{sT3}, s{sJOB}, 160")
        a(f"s_mul_i32 s{sT4}, s{sA}, 1280")
        a(f"s_add_u32 s{sT3}, s{sT3}, s{sT4}")
        a(f"s_add_u32 s{sT3}, s{sT3}, 1280")
        a(f"s_cmp_eq_u32 s{sTYPE}, 0")
        a(f"s_cselect_b32 s{sWOFF}, s{sT3}, s{sWOFF}")
        a(f"s_mul_i32 s{sT3}, s{sJOB}, 320")
        a(f"s_mul_i32 s{sT4}, s{sA}, 160")
        a(f"s_add_u32 s{sT3}, s{sT3}, s{sT4}")
        a(f"s_cmp_eq_u32 s{sTYPE}, 1")
        a(f"s_cselect_b32 s{sWOFF}, s{sT3}, s{sWOFF}")
        a(f"s_movk_i32 s{sSTRIDE}, 3840")
        a(f"s_cmp_eq_u32 s{sTYPE}, 2")
        a(f"s_cselect_b32 s{sSTRIDE}, 3072, s{sSTRIDE}")
        a(f"s_lshl_b32 s{sWCH}, s{sSTRIDE}, 6")
        a(f"v_lshlrev_b32 v8, 5, v{vLANE}")
        a(f"v_mov_b32 v7, {OOB}")
        a(f"v_cmp_gt_u32 vcc, 40, v{vLANE}")
        a(f"v_cndmask_b32 v8, v7, v8, vcc")
        a(f"v_lshrrev_b32 v5, 4, v{vLANE}")
        a(f"v_and_b32 v6, 15, v{vLANE}")
        a(f"v_mul_u32_u24 v5, s{sSTRIDE}, v5")
        a(f"v_lshl_add_u32 v15, v6, 4, v5")
        a(f"v_cmp_gt_u32 vcc, 10, v6")
        a(f"v_cndmask_b32 v15, v7, v15, vcc")
        a(f"s_lshl_b32 s{sT2}, s{sRB}, 8")
        a(f"s_lshl_b32 s{sT3}, s{sJIDX}, 3")
        a(f"s_add_u32 s{sT2}, s{sT2}, s{sT3}")
        a(f"s_add_u32 s{sD}, s{sT2}, s{sWAVE}")
        a(f"s_mul_i32 s{sT2}, s{sD}, 1280")
        a(f"s_and_b32 s{sT3}, s{sWAVE}, 3")
        a(f"s_mul_i32 s{sT4}, s{sT3}, 20")
        a(f"s_mul_i32 s{sT5}, s{sRB}, 80")
        a(f"s_add_u32 s{sT4}, s{sT4}, s{sT5}")
        a(f"s_mul_i32 s{sT4}, s{sT4}, s{sSTRIDE}")
        a(f"s_add_u32 s{sKH}, s{sT4}, s{sWOFF}")
        a(f"s_lshl_b32 s{sTT}, s{sSTRIDE}, 2")
        a(f"v_lshrrev_b32 v3, 3, v{vLANE}")
        a(f"v_and_b32 v4, 7, v{vLANE}")
        a(f"v_lshrrev_b32 v5, 4, v{vLANE}")
        a(f"v_mul_u32_u24 v6, 1280, v3")
        a(f"v_xor_b32 v7, v5, v4")
        a(f"v_lshl_add_u32 v{vXS[0]}, v7, 4, v6")
        a(f"v_add_u32 v5, 4, v5")
        a(f"v_xor_b32 v7, v5, v4")
        a(f"v_lshl_add_u32 v{vXS[1]}, v7, 4, v6")
        a(f"s_lshl_b32 s{sT4}, s{sRB}, 8")
        a(f"s_lshl_b32 s{sT5}, s{sWAVE}, 5")
        a(f"s_add_u32 s{sT4}, s{sT4}, s{sT5}")
        a(f"s_mul_i32 s{sXOFF}, s{sT4}, 1280")
        a(f"s_lshl_b32 s{sXBEG}, s{sWAVE}, 12")
        a(f"s_cmp_lt_u32 s{sT3}, 2")
        a(f"s_cselect_b32 s{sW3F}, 1, 0")
        a(f"s_lshl_b32 s{sT4}, s{sT3}, 6")
        for j in range(3):
            a(f"v_add_u32 v5, s{sT4}, v{vLANE}")
            if j: a(f"v_add_u32 v5, {j*256}, v5")
            a("v_mul_u32_u24 v6, 6554, v5")
            a("v_lshrrev_b32 v6, 16, v6")
            a("v_mul_u32_u24 v7, 10, v6")
            a("v_sub_u32 v7, v5, v7")
            a(f"v_mul_u32_u24 v6, s{sSTRIDE}, v6")
            a(f"v_lshl_add_u32 v{vWS[j]}, v7, 4, v6")
        a(f"s_mul_i32 s{sWBEG}, s{sA}, {WA1}")
        a(f"s_lshl_b32 s{sT4}, s{sT3}, 10")
        a(f"s_add_u32 s{sWBEG}, s{sWBEG}, s{sT4}")
        a(f"s_add_u32 s{sWBEG}, s{sWBEG}, {WBASE}")
        a(f"s_mov_b32 s{sOOB}, {OOB}")
        a(f"s_mov_b32 s{sWDST}, s{sWBEG}")
        a(f"s_mov_b32 s{sXDST}, s{sXBEG}")
        a(f"v_and_b32 v5, 31, v{vLANE}")
        a(f"v_lshrrev_b32 v6, 5, v{vLANE}")
        a("v_lshrrev_b32 v7, 1, v5")
        a("v_and_b32 v7, 7, v7")
        a("v_xor_b32 v7, v7, v6")
        a("v_lshlrev_b32 v7, 4, v7")
        a("v_lshl_add_u32 v5, v5, 7, v7")
        a(f"v_add_u32 v5, s{sXBEG}, v5")
        for ks in range(4): a(f"v_xor_b32 v{vXA[ks]}, {ks<<5}, v5")
        a(f"v_lshrrev_b32 v5, 4, v{vLANE}")
        a("v_and_b32 v6, 1, v5")
        a(f"v_mul_u32_u24 v6, {WA1}, v6")
        a("v_lshrrev_b32 v5, 1, v5")
        a("v_lshlrev_b32 v5, 3, v5")
        a(f"v_bfe_u32 v7, v{vLANE}, 2, 2")
        a("v_add_u32 v5, v5, v7")
        a("v_mul_u32_u24 v5, 160, v5")
        a(f"v_and_b32 v7, 3, v{vLANE}")
        a("v_lshl_add_u32 v5, v7, 3, v5")
        a("v_add_u32 v5, v5, v6")
        a(f"v_add_u32 v{vWA}, {WBASE}, v5")
        a(f"v_and_b32 v5, 1, v{vLANE}")
        a("v_lshlrev_b32 v5, 4, v5")
        a("v_mov_b32 v6, 0x3f80")
        a("v_lshlrev_b32 v5, v5, v6")
        a(f"v_bfe_u32 v6, v{vLANE}, 1, 3")
        for d in range(4):
            a(f"v_cmp_eq_u32 vcc, {d}, v6")
            a(f"v_cndmask_b32 v{88+d}, 0, v5, vcc")
        a("v_mov_b32 v92, 0x3f803f80")
        a("v_mov_b32 v60, 0"); a("v_mov_b32 v61, 0"); a("v_mov_b32 v62, 0"); a("v_mov_b32 v63, 0")
        self.lane0_off(93)
        a(f"s_mov_b32 s{sMASK}, 0xffff0000")
        a(f"s_mov_b32 s{sWSTp}, {WST}"); a(f"s_mov_b32 s{sWSTm}, {(-2*WST) & 0xffffffff}")
        a(f"s_mov_b32 s{sXSTp}, {XST}"); a(f"s_mov_b32 s{sXSTm}, {(-2*XST) & 0xffffffff}")
        a(f"s_add_u32 s{sWEND}, s{sWBEG}, {3*WST}")
        a(f"s_add_u32 s{sXEND}, s{sXBEG}, {3*XST}")
        a(f"s_mov_b32 s{sRST}, 0")
        a(f"s_mov_b32 s{sC}, 0")
        a(f"s_mov_b32 s{sE}, 0")
        a(f"s_mov_b32 s{sSPEC}, { self.o['specmask'] if self.o.get('specmask') is not None else (0 if self.o.get('x_nospec') else (1<<0)|(1<<1)|(1<<2)|(1<<3)|(1<<4)|(1<<6)|(1<<7)|(1<<8)|(1<<9))}")
        a(f"s_mov_b32 s{sP2OK}, s{sT2}")
        a("s_waitcnt lgkmcnt(0)")
        if self.o.get("ts"): a("s_memrealtime s[26:27]")
        self.build_srd(sX, PX, 2621440)
        a(f"s_cmp_eq_u32 s{sA}, 0")
        a(f"s_cselect_b32 s{sW}, s{PWG}, s{PWU}")
        a(f"s_cselect_b32 s{sW+1}, s{PWG+1}, s{PWU+1}")
        a(f"s_cmp_eq_u32 s{sTYPE}, 2")
        a(f"s_cselect_b32 s{sW}, s{sW}, s{PQKV}")
        a(f"s_cselect_b32 s{sW+1}, s{sW+1}, s{PQKV+1}")
        a(f"s_mov_b32 s{sT3}, 2457600")
        a(f"s_cselect_b32 s{sW+2}, 1966080, s{sT3}")
        a(f"s_mov_b32 s{sW+3}, 0x00020000")
        for j in range(3): self.dma_w(j)
        for q in range(4): self.dma_x(q)
        if self.o.get("ts"): a(f"s_memrealtime s[{sRB2}:{sRB2+1}]")
        a(f"buffer_load_dwordx4 v[156:159], v8, {srd(sX)}, s{sP2OK} offen")
        a(f"buffer_load_dwordx4 v[160:163], v8, {srd(sX)}, s{sP2OK} offen offset:16")
        for c in range(2):
            if c == 1:
                for j in range(3): self.dma_w(j)
                for q in range(4): self.dma_x(q)
            a(f"s_add_u32 s{sWOFF}, s{sWOFF}, s{sWCH}")
            a(f"s_add_u32 s{sXOFF}, s{sXOFF}, 128")
            a(f"s_add_u32 s{sWDST}, s{sWDST}, {WST}")
            a(f"s_add_u32 s{sXDST}, s{sXDST}, {XST}")
        if self.o.get("cpf"):
            a(f"s_cmp_eq_u32 s{sWAVE}, 7")
            a("s_cbranch_scc0 L_nocpf")
            a(f"s_getpc_b64 s[{sTS}:{sTS+1}]")
            a(f"s_and_b32 s{sTS}, s{sTS}, 0xffffff00")
            a(f"v_lshlrev_b32 v2, 7, v{vLANE}")
            for k in range(5):
                a(f"global_load_dword v124, v2, s[{sTS}:{sTS+1}]")
                a("v_add_u32 v2, 8192, v2")
            a.label("L_nocpf")
        self.build_srd(sWS, PWS, WS_SIZE + (DBG_SIZE if self.o.get("dev") else 0))
        self.build_srd(sDBG, PDBG, 256)
        self.ts(0)
        self.ts(10, entry=True)
        self.ts(14, src=26)
        self.ts(15, src=sRB2)
        nts = self.nts([0, 10, 14, 15])
        a(f"v_lshlrev_b32 v{vTCH}, 7, v{vLANE}")
        a(f"s_mov_b32 s{sTCH}, s{PWD}"); a(f"s_mov_b32 s{sTCH+1}, s{PWD+1}"); a(f"s_mov_b32 s{sTCH+2}, 1966080"); a(f"s_mov_b32 s{sTCH+3}, 0x00020000")
        a(f"s_lshr_b32 s{sT3}, s2, 3")
        a(f"s_mul_i32 s{sT2}, s{sT3}, {480*128}")
        a(f"s_mul_i32 s{sT4}, s{sT3}, {200*128}")
        a(f"s_mov_b32 s{sTCO}, s{sOOB}"); a(f"s_mov_b32 s{sTCS}, 0")
        a(f"s_cmp_eq_u32 s{sWAVE}, 2")
        a(f"s_cselect_b32 s{sTCS}, 8192, s{sTCS}"); a(f"s_cselect_b32 s{sTCO}, s{sT2}, s{sTCO}")
        a(f"s_add_u32 s{sT2}, s{sT2}, {240*128}")
        a(f"s_cmp_eq_u32 s{sWAVE}, 3")
        a(f"s_cselect_b32 s{sTCS}, 8192, s{sTCS}"); a(f"s_cselect_b32 s{sTCO}, s{sT2}, s{sTCO}")
        a(f"s_cmp_eq_u32 s{sWAVE}, 6")
        a(f"s_cselect_b32 s{sTCS}, 8192, s{sTCS}"); a(f"s_cselect_b32 s{sTCO}, s{sT4}, s{sTCO}")
        a(f"s_cselect_b32 s{sTCH}, s{PWO}, s{sTCH}"); a(f"s_cselect_b32 s{sTCH+1}, s{PWO+1}, s{sTCH+1}"); a(f"s_cselect_b32 s{sTCH+2}, 819200, s{sTCH+2}")
        self.build_srd(sT0, PPHI, 25600)
        nz = 0
        a(f"s_cmp_eq_u32 s{sTYPE}, 0")
        a("s_cbranch_scc0 L_nozkv")
        a(f"s_cmp_eq_u32 s{sRB}, 0")
        a("s_cbranch_scc0 L_nozkv")
        a(f"s_lshl_b32 s{sT2}, s{sJOB}, 14")
        a(f"s_lshl_b32 s{sT3}, s{sWAVE}, 11")
        a(f"s_add_u32 s{sT2}, s{sT2}, s{sT3}")
        a(f"s_add_u32 s{sT2}, s{sT2}, {KV_OFF}")
        a(f"v_lshlrev_b32 v7, 4, v{vLANE}")
        a(f"buffer_store_dwordx4 v[60:63], v7, {srd(sWS)}, s{sT2} offen sc1")
        a(f"buffer_store_dwordx4 v[60:63], v7, {srd(sWS)}, s{sT2} offen offset:1024 sc1")
        a(f"s_lshl_b32 s{sT2}, s{sJOB}, 8")
        a(f"s_add_u32 s{sT2}, s{sT2}, {CNT_OFF + 16*256}")
        a(f"buffer_store_dword v60, v93, {srd(sWS)}, s{sT2} offen sc1")
        a("s_branch L_zdone")
        a.label("L_nozkv")
        a(f"s_cmp_eq_u32 s{sJIDX}, 3")
        a("s_cbranch_scc0 L_zdone")
        a(f"s_lshl_b32 s{sT2}, s{sRB}, 8")
        a(f"s_add_u32 s{sT2}, s{sT2}, {CNT_OFF}")
        a(f"buffer_store_dword v60, v93, {srd(sWS)}, s{sT2} offen sc1")
        a(f"s_add_u32 s{sT2}, s{sT2}, {8*256}")
        a(f"buffer_store_dword v60, v93, {srd(sWS)}, s{sT2} offen sc1")
        a.label("L_zdone")
        a(f"s_cmp_eq_u32 s{sWAVE}, 0")
        a("s_cbranch_scc0 L_nozl")
        a(f"v_mov_b32 v7, {L_ZERO}")
        a("ds_write_b128 v7, v[60:63]")
        a("v_mov_b32 v4, 0x3f80"); a("v_mov_b32 v5, 0")
        a("ds_write_b64 v7, v[4:5] offset:16")
        a.label("L_nozl")
        for t in range(5):
            a(f"v_mov_b32 v{AP+4*t+2}, 0"); a(f"v_mov_b32 v{AP+4*t+3}, 0")
        a(f"s_mov_b32 s{sA}, s{sP2OK}")
        self.p2_setup()
        if self.o.get("prots"):
            a("s_memrealtime s[98:99]")
        a(f"s_waitcnt vmcnt(7)")
        if self.o.get("prots"):
            a("s_waitcnt lgkmcnt(0)")
            a("s_mov_b32 s27, s98")
            self.ts(13, src=27)
            self.ts(12)
        a("v_mov_b32 v2, 0"); a("v_mov_b32 v4, 0")
        for i in range(8):
            a(f"v_dot2c_f32_bf16 v2, v{156+i}, v92")
            a(f"v_dot2c_f32_bf16 v4, v{156+i}, v{156+i}")
        for r in (8, 4, 2, 1):
            a(f"v_add_f32_dpp v2, v2, v2 row_ror:{r} row_mask:0xf bank_mask:0xf")
            a(f"v_add_f32_dpp v4, v4, v4 row_ror:{r} row_mask:0xf bank_mask:0xf")
        a("v_mov_b32 v3, v2"); a("v_mov_b32 v5, v4")
        a("v_permlane16_swap_b32 v2, v3"); a("v_permlane16_swap_b32 v4, v5")
        a("v_add_f32 v2, v2, v3"); a("v_add_f32 v4, v4, v5")
        a("v_mov_b32 v3, v2"); a("v_mov_b32 v5, v4")
        a("v_permlane32_swap_b32 v2, v3"); a("v_permlane32_swap_b32 v4, v5")
        a("v_add_f32 v2, v2, v3"); a("v_add_f32 v5, v4, v5")
        a(f"v_mul_f32 v4, {f2u(1.0/640):#x}, v2")
        a(f"v_mul_f32 v5, {f2u(1.0/640):#x}, v5")
        a("v_fma_f32 v5, -v4, v4, v5")
        a("v_max_f32 v5, 0, v5")
        a(f"v_add_f32 v5, {f2u(1e-5):#x}, v5")
        a(f"s_lshl_b32 s{sT2}, s{sD}, 3")
        a(f"s_add_u32 s{sT2}, s{sT2}, {ST_OFF}")
        a(f"buffer_store_dwordx2 v[4:5], v93, {srd(sWS)}, s{sT2} offen sc1")
        if self.o.get("prots"): self.ts(6)
        a("s_waitcnt lgkmcnt(0)")
        a("s_barrier")
        self.ts(1)
        if self.o.get("cyc"):
            a("s_memtime s[26:27]")
            self.ts(13, src=26)

    def cs_mfma(self, a):
        for i in range(5):
            c = "0" if i == 0 else "v[84:87]"
            a(f"v_mfma_f32_16x16x32_bf16 v[84:87], v[88:91], v[{64+4*i}:{67+4*i}], {c}")
        a(f"v_and_b32 v6, 15, v{vLANE}")
        a(f"v_lshrrev_b32 v7, 4, v{vLANE}")
        a("v_lshlrev_b32 v5, 5, v6")
        a("v_lshl_add_u32 v5, v7, 4, v5")
        a(f"s_mul_i32 s{sT2}, s{sWAVE}, 320")
        a(f"s_add_u32 s{sT2}, s{sT2}, {L_CSP}")
        a(f"v_add_u32 v5, s{sT2}, v5")
        a(f"v_mov_b32 v3, {L_DUMMY}")
        a("v_cmp_gt_u32 vcc, 10, v6")
        a("s_nop 1")
        a("v_cndmask_b32 v5, v3, v5, vcc")
        a("v_cmp_gt_u32 vcc, 2, v7")
        a("s_nop 1")
        a("v_cndmask_b32 v5, v3, v5, vcc")
        a("s_nop 4")
        a("ds_write_b128 v5, v[84:87]")

    def cs_cross(self, a):
        a(f"v_cmp_le_u32 vcc, 10, v{vLANE}")
        a(f"v_subrev_u32 v7, 10, v{vLANE}")
        a("s_nop 0")
        a(f"v_cndmask_b32 v7, v{vLANE}, v7, vcc")
        a("v_cndmask_b32 v8, 0, 1, vcc")
        a("v_mul_u32_u24 v5, 1280, v8")
        a("v_lshl_add_u32 v5, v7, 5, v5")
        a(f"v_add_u32 v5, {L_CSP}, v5")
        a(f"v_mov_b32 v6, {L_ZERO}")
        a(f"v_cmp_gt_u32 vcc, 20, v{vLANE}")
        a("s_nop 1")
        a("v_cndmask_b32 v5, v6, v5, vcc")
        for k in range(4):
            a(f"ds_read_b128 v[{64+8*k}:{67+8*k}], v5 offset:{k*320}")
            a(f"ds_read_b128 v[{68+8*k}:{71+8*k}], v5 offset:{k*320+16}")
        a("v_lshrrev_b32 v5, 1, v7")
        a("v_lshlrev_b32 v5, 5, v5")
        a("v_lshl_add_u32 v5, v8, 4, v5")
        a("v_and_b32 v6, 1, v7")
        a("v_lshl_add_u32 v5, v6, 3, v5")
        a("v_lshlrev_b32 v5, 2, v5")
        a(f"v_mov_b32 v6, {OOB}")
        a("v_cndmask_b32 v5, v6, v5, vcc")
        a(f"s_lshl_b32 s{sT2}, s{sJIDX}, 3")
        a(f"s_add_u32 s{sT2}, s{sT2}, s{sRB}")
        a(f"s_mul_i32 s{sT2}, s{sT2}, 640")
        a(f"s_add_u32 s{sT2}, s{sT2}, {CSP_OFF}")
        a("s_waitcnt lgkmcnt(0)")
        for e in range(8):
            a(f"v_add_f32 v{64+e}, v{64+e}, v{72+e}")
            a(f"v_add_f32 v{80+e}, v{80+e}, v{88+e}")
            a(f"v_add_f32 v{64+e}, v{64+e}, v{80+e}")
        a(f"buffer_store_dwordx4 v[64:67], v5, {srd(sWS)}, s{sT2} offen sc1")
        a(f"buffer_store_dwordx4 v[68:71], v5, {srd(sWS)}, s{sT2} offen offset:16 sc1")

    def touch_issue(self):
        a = self.a
        a(f"s_sub_u32 s{sT2}, s{sC}, s{sTCB}")
        a(f"s_cmp_lt_u32 s{sT2}, s{sTCN}")
        a(f"s_cselect_b32 s{sT3}, s{sTCO}, s{sOOB}")
        a(f"s_cselect_b32 s{sT4}, s{sTCS}, 0")
        a(f"buffer_load_dword v{vTCD}, v{vTCH}, {srd(sTCH)}, s{sT3} offen")
        a(f"s_add_u32 s{sTCO}, s{sTCO}, s{sT4}")

    def dma_w(self, j):
        a = self.a
        if j < 2:
            a(f"s_add_u32 m0, s{sWDST}, {j*4096}")
            a("s_nop 0")
            a(f"buffer_load_dwordx4 v{vWS[j]}, {srd(sW)}, s{sWOFF} offen lds")
        else:
            a(f"s_add_u32 s{sT4}, s{sWDST}, 8192")
            a(f"s_cmp_lg_u32 s{sW3F}, 0")
            a(f"s_cselect_b32 m0, s{sT4}, {L_DUMMY}")
            a(f"s_cselect_b32 s{sT3}, s{sWOFF}, s{sOOB}")
            a(f"buffer_load_dwordx4 v{vWS[j]}, {srd(sW)}, s{sT3} offen lds")

    def dma_x(self, q):
        a = self.a
        a(f"s_add_u32 m0, s{sXDST}, {q*1024}")
        a(f"s_add_u32 s{sT5}, s{sXOFF}, {q*8*1280}")
        a(f"buffer_load_dwordx4 v{vXS[q&1]}, {srd(sX)}, s{sT5} offen lds")

    def wphi_gather(self, which, a=None):
        a = a or self.a
        a(f"s_lshr_b32 s{sT2}, s{sWAVE}, 1")
        a(f"s_and_b32 s{sT3}, s{sWAVE}, 1")
        a(f"s_lshl_b32 s{sT4}, s{sJOB}, 2")
        a(f"s_lshl_b32 s{sT5}, s{sJOB}, 3")
        a(f"s_cmp_eq_u32 s{sTYPE}, 0")
        a(f"s_cselect_b32 s{sT4}, s{sT4}, s{sT5}")
        a(f"s_add_u32 s{sT4}, s{sT4}, s{sT2}")
        if which: a(f"s_add_u32 s{sT4}, s{sT4}, 4")
        a(f"s_mul_i32 s{sT4}, s{sT4}, 800")
        a(f"s_and_b32 s{sT5}, s{sT2}, 1")
        a(f"s_lshl_b32 s{sT3}, s{sT3}, 2")
        a(f"s_sub_u32 s{sT3}, s{sT3}, s{sT5}")
        a(f"v_bfe_u32 v2, v{vLANE}, 3, 2")
        a(f"v_and_b32 v3, 3, v{vLANE}")
        a("v_lshl_add_u32 v2, v2, 2, v3")
        a(f"v_bfe_u32 v3, v{vLANE}, 2, 1")
        a("v_mul_u32_u24 v3, 10, v3")
        a("v_add_u32 v3, v3, v2")
        a(f"v_lshrrev_b32 v4, 5, v{vLANE}")
        a(f"v_add_u32 v4, s{sT3}, v4")
        for jh in range(2):
            if jh: a("v_add_u32 v4, 2, v4")
            a("v_mul_u32_u24 v5, 160, v4")
            a("v_lshl_add_u32 v5, v3, 1, v5")
            a("v_cmp_gt_u32 vcc, 5, v4")
            a(f"v_mov_b32 v6, {OOB}")
            a("v_cndmask_b32 v5, v6, v5, vcc")
            a("v_cmp_gt_u32 vcc, 10, v2")
            a("v_cndmask_b32 v5, v6, v5, vcc")
            for e in range(4):
                d = WRAW + 8 * which + 4 * jh + e
                a(f"buffer_load_ushort v{d}, v5, {srd(sT0)}, s{sT4} offen offset:{e*40}")

    def p2_setup(self):
        a = self.a
        a(f"s_lshr_b32 s{sT2}, s2, 3")
        a(f"s_sub_u32 s{sT3}, s{sT2}, 4")
        a(f"s_cmp_lt_u32 s{sT2}, 8")
        a(f"s_cselect_b32 s{sT3}, s{sT2}, s{sT3}")
        a(f"s_and_b32 s{sT5}, s{sXCD}, 1")
        a(f"s_sub_u32 s{sT4}, 28, s{sT5}")
        a(f"s_cmp_lt_u32 s{sT3}, s{sT4}")
        a(f"s_cselect_b32 s{sP2OK}, 1, 0")
        a(f"s_cmp_eq_u32 s{sTYPE}, 1")
        a(f"s_cselect_b32 s{sP2OK}, 0, s{sP2OK}")
        a(f"s_lshr_b32 s{sT4}, s{sXCD}, 1")
        a(f"s_mul_i32 s{sT4}, s{sT4}, 55")
        a(f"s_mul_i32 s{sT5}, s{sT5}, 28")
        a(f"s_add_u32 s{sT4}, s{sT4}, s{sT5}")
        a(f"s_add_u32 s{sT4}, s{sT4}, s{sT3}")
        a(f"s_mul_i32 s{sRB2}, s{sT4}, 6554")
        a(f"s_lshr_b32 s{sRB2}, s{sRB2}, 16")
        a(f"s_mul_i32 s{sT2}, s{sRB2}, 10")
        a(f"s_sub_u32 s{sCB}, s{sT4}, s{sT2}")
        a(f"v_lshrrev_b32 v2, 3, v{vLANE}")
        a(f"v_and_b32 v3, 7, v{vLANE}")
        a("v_bfe_u32 v4, v2, 1, 1")
        a("v_lshlrev_b32 v4, 2, v4")
        a("v_xor_b32 v3, v3, v4")
        a("v_lshlrev_b32 v3, 4, v3")
        a("v_lshrrev_b32 v4, 2, v2")
        a("v_lshlrev_b32 v4, 3, v4")
        a("v_and_b32 v5, 3, v2")
        a("v_add_u32 v4, v4, v5")
        a("v_mul_u32_u24 v4, 1280, v4")
        a(f"v_add_u32 v{vP2}, v4, v3")
        a(f"v_add_u32 v{vP2+1}, {4*1280}, v{vP2}")
        a("v_mul_u32_u24 v4, 2560, v2")
        a(f"v_add_u32 v{vP2+2}, v4, v3")
        a(f"v_add_u32 v{vP2+3}, 1280, v{vP2+2}")
        a(f"s_and_b32 s{sT2}, s{sWAVE}, 1")
        a(f"s_cmp_eq_u32 s{sT2}, 0")
        a("s_cselect_b64 vcc, -1, 0")
        a(f"v_cndmask_b32 v99, v{vP2+1}, v{vP2}, vcc")

    def p2_pref_begin(self):
        a = self.a
        self.build_srd(sT0, PWD, 1966080)
        self.build_srd(sT1, PWO, 819200)
        a(f"s_lshr_b32 s{sA}, s{sWAVE}, 1")
        a(f"s_and_b32 s{sE}, s{sWAVE}, 1")
        a(f"s_mul_i32 s{sTMP}, s{sA}, 40960")
        a(f"s_mul_i32 s{sA}, s{sA}, 24")
        a(f"s_mul_i32 s{sE}, s{sE}, 10")
        a(f"s_add_u32 s{sA}, s{sA}, s{sE}")
        a(f"s_mul_i32 s{sA}, s{sA}, {16*1280}")
        a(f"s_lshl_b32 s{sE}, s{sE}, 11")
        a(f"s_add_u32 s{sE}, s{sE}, s{sTMP}")
        a(f"s_lshl_b32 s{sTMP}, s{sCB}, 7")
        a(f"s_add_u32 s{sA}, s{sA}, s{sTMP}")
    def p2_pref(self, i):
        a = self.a
        n, hh = i >> 1, i & 1
        a(f"s_add_u32 m0, s{sE}, {n * 2048 + hh * 1024}")
        a(f"s_add_u32 s{sTMP}, s{sA}, {n * 16 * 1280}")
        a(f"buffer_load_dwordx4 v{vP2+hh}, {srd(sT0)}, s{sTMP} offen lds")

    def rd_x(self, ks):
        r = XF[ks & 1]
        self.a(f"ds_read_b128 v[{r}:{r+3}], v{vXA[ks]}")
    def rd_w(self, ks, t):
        r = WF + 4 * t
        self.a(f"ds_read_b64_tr_b16 v[{r}:{r+1}], v{vWA} offset:{ks*2560 + t*32}")
        self.a(f"ds_read_b64_tr_b16 v[{r+2}:{r+3}], v{vWA} offset:{ks*2560 + 640 + t*32}")

    def mainloop(self):
        a = self.a
        vm = []
        def V(tag): vm.append(tag)
        def wait_n(tags):
            last = max(i for i, t in enumerate(vm) if t in tags)
            return len(vm) - 1 - last
        def rdw(c, ks, t):
            r = WF + 4 * t
            o = (c % 3) * WST + ks * 2560 + t * 32
            a(f"ds_read_b64_tr_b16 v[{r}:{r+1}], v{vWA} offset:{o}")
            a(f"ds_read_b64_tr_b16 v[{r+2}:{r+3}], v{vWA} offset:{o + 640}")
        def dw(c, j):
            st = (c % 3) * WST
            if j < 2:
                a(f"s_add_u32 m0, s{sWBEG}, {st + j*4096}")
                a("s_nop 0")
                a(f"buffer_load_dwordx4 v{vWS[j]}, {srd(sW)}, s{sWOFF} offen lds")
            else:
                a(f"s_add_u32 s{sDW}, s{sWBEG}, {st + 8192}")
                a(f"s_cmp_lg_u32 s{sW3F}, 0")
                a(f"s_cselect_b32 m0, s{sDW}, {L_DUMMY}")
                a(f"s_cselect_b32 s{sDX}, s{sWOFF}, s{sOOB}")
                a(f"buffer_load_dwordx4 v{vWS[j]}, {srd(sW)}, s{sDX} offen lds")
                a(f"s_add_u32 s{sWOFF}, s{sWOFF}, s{sWCH}")
            V(f"D{c}")
        def dx(c, q):
            a(f"s_add_u32 m0, s{sXBEG}, {(c % 3) * XST + q*1024}")
            a(f"s_add_u32 s{sRST}, s{sXOFF}, {(c - 2) * 128 + q*8*1280}")
            a(f"buffer_load_dwordx4 v{vXS[q&1]}, {srd(sX)}, s{sRST} offen lds")
            V(f"D{c}")
        for _ in range(7): V("D0")
        V("st"); V("st")
        for _ in range(7): V("D1")
        V("ss")
        self.rd_x(0)
        for t in range(5): rdw(0, 0, t)
        for j in range(3): dw(2, j)
        for q in range(4): dx(2, q)
        for i in range(5):
            a(f"buffer_load_dwordx4 v[{64+4*i}:{67+4*i}], v15, {srd(sW)}, s{sKH} offen")
            if i < 4: a(f"s_add_u32 s{sKH}, s{sKH}, s{sTT}")
            V("CS")
        fill = []
        class _C(Asm): pass
        def units_from(fn, per=1):
            t = _C(); fn(t)
            out, cur = [], []
            for ln in t.l:
                cur.append(ln)
                op = ln.split()[0]
                opens = op.startswith("s_cmp") or op.startswith("v_cmp") or op.startswith("s_add_u32 m0") or op in ("s_nop",)
                if not opens:
                    out.append(cur); cur = []
            if cur: out.append(cur)
            return out
        def drain(n):
            k = 0
            while fill and k < n:
                u = fill.pop(0)
                for ln in u:
                    if isinstance(ln, tuple): V(ln[1])
                    else: a(ln)
                k += max(1, sum(1 for x in u if not isinstance(x, tuple)))
        def vm_unit(instr, tag): return [instr, ("V", tag)]
        def f_phi():
            u = []
            for which in range(2):
                t = _C(); self.wphi_gather(which, t)
                loads = [l for l in t.l if l.startswith("buffer_load")]
                cur = []
                pre = []
                for ln in t.l:
                    if ln.startswith("buffer_load"):
                        cur.append(ln)
                        if len(cur) == 4:
                            lab = a.uniq("L_phisk")
                            cond = [f"s_cmp_eq_u32 s{sTYPE}, 2", f"s_cbranch_scc1 {lab}"] if which == 0 else [f"s_cmp_lg_u32 s{sTYPE}, 1", f"s_cbranch_scc1 {lab}"]
                            u.append(cond + cur + [lab + ":"]); cur = []
                    else:
                        pre.append(ln)
                        op = ln.split()[0]
                        if not (op.startswith("s_cmp") or op.startswith("v_cmp")):
                            u.append(pre); pre = []
            return u
        def blk_wave0(fn):
            lab = a.uniq("L_w0")
            t = _C(); fn(t)
            return [[f"s_cmp_eq_u32 s{sWAVE}, 0", f"s_cbranch_scc0 {lab}"] + t.l + [lab + ":"]]
        def arrival(o):
            o(f"v_mov_b32 v2, 1")
            self.lane0_off(3, o)
            o(f"s_lshr_b32 s{sT2}, s{sRB}, 1")
            o(f"s_lshl_b32 s{sT2}, s{sT2}, 6")
            o(f"s_and_b32 s{sT3}, s{sRB}, 1")
            o(f"s_lshl_b32 s{sT3}, s{sT3}, 2")
            o(f"s_add_u32 s{sT2}, s{sT2}, s{sT3}")
            o(f"buffer_atomic_add v2, v3, {srd(sDBG)}, s{sT2} offen")
        def f_stats_loads():
            u = units_from(lambda o: (
                o(f"v_and_b32 v2, 31, v{vLANE}"), o("v_lshlrev_b32 v3, 3, v2"),
                o(f"s_lshl_b32 s{sT2}, s{sRB}, 8"), o(f"s_lshl_b32 s{sTMP}, s{sWAVE}, 5"), o(f"s_add_u32 s{sT2}, s{sT2}, s{sTMP}"),
                o(f"s_lshl_b32 s{sT2}, s{sT2}, 3"), o(f"s_add_u32 s{sT2}, s{sT2}, {ST_OFF}")))
            u.append(vm_unit(f"buffer_load_dwordx2 v[{vSTAT}:{vSTAT+1}], v3, {srd(sWS)}, s{sT2} offen sc1", "SL"))
            u += units_from(lambda o: (
                o("v_lshlrev_b32 v3, 2, v2"), o(f"s_mul_i32 s{sT2}, s{sJIDX}, {8*640}"), o(f"s_min_u32 s{sTMP}, s{sWAVE}, 4"),
                o(f"s_lshl_b32 s{sTMP}, s{sTMP}, 7"), o(f"s_add_u32 s{sT2}, s{sT2}, s{sTMP}"), o(f"s_add_u32 s{sT2}, s{sT2}, {CSP_OFF}")))
            for r in range(8):
                if r * 640 < 4096: u.append(vm_unit(f"buffer_load_dword v{CSL+r}, v3, {srd(sWS)}, s{sT2} offen offset:{r*640} sc1", "SL"))
                else:
                    u.append([f"s_add_u32 s{sTMP}, s{sT2}, {r*640}"] + vm_unit(f"buffer_load_dword v{CSL+r}, v3, {srd(sWS)}, s{sTMP} offen sc1", "SL"))
            return u
        def build(o):
            o(f"v_rsq_f32 v{vRSTD}, v{vSTAT+1}")
            o(f"v_sub_f32 v2, 0, v{vSTAT}")
            o(f"v_cvt_pk_bf16_f32 v{BP}, v2, v2")
            o(f"v_and_b32 v3, s{sMASK}, v{BP}")
            o("v_sub_f32 v3, v2, v3")
            o(f"v_cvt_pk_bf16_f32 v{BP+1}, v3, 0")
            o(f"v_mov_b32 v{BP+2}, 0"); o(f"v_mov_b32 v{BP+3}, 0")
            for r in (0, 2, 4, 6): o(f"v_add_f32 v{CSL+r}, v{CSL+r}, v{CSL+r+1}")
            o(f"v_add_f32 v{CSL}, v{CSL}, v{CSL+2}"); o(f"v_add_f32 v{CSL+4}, v{CSL+4}, v{CSL+6}")
            o(f"v_add_f32 v{CSL}, v{CSL}, v{CSL+4}")
            o(f"v_cvt_pk_bf16_f32 v5, v{CSL}, 0")
            o("v_lshlrev_b32 v2, 16, v5")
            o(f"v_sub_f32 v2, v{CSL}, v2")
            o(f"v_cvt_pk_bf16_f32 v4, v{CSL}, v2")
            o(f"v_lshlrev_b32 v6, 3, v{vLANE}")
            o(f"s_lshl_b32 s{sT2}, s{sWAVE}, 8")
            o(f"s_add_u32 s{sT2}, s{sT2}, {L_CSP}")
            o(f"v_add_u32 v6, s{sT2}, v6")
            o(f"v_mov_b32 v7, {L_DUMMY}")
            o(f"v_cmp_gt_u32 vcc, 32, v{vLANE}")
            o("v_cndmask_b32 v6, v7, v6, vcc")
            o(f"s_cmp_ge_u32 s{sWAVE}, 5")
            o("s_cselect_b64 vcc, -1, 0")
            o("v_cndmask_b32 v6, v6, v7, vcc")
            o("ds_write_b64 v6, v[4:5]")
            for i in range(8): o(f"v_lshl_or_b32 v{WPHI+i}, v{WRAW+2*i+1}, 16, v{WRAW+2*i}")
            o(f"v_lshlrev_b32 v6, 4, v{vLANE}")
            o(f"s_lshl_b32 s{sT2}, s{sWAVE}, 10")
            o(f"s_add_u32 s{sT2}, s{sT2}, {L_WPHI}")
            o(f"v_add_u32 v6, s{sT2}, v6")
            o(f"ds_write_b128 v6, v[{WPHI}:{WPHI+3}]")
            o(f"ds_write_b128 v6, v[{WPHI+4}:{WPHI+7}] offset:8192")
        def areads(o):
            o(f"v_lshlrev_b32 v6, 3, v{vLANE}")
            o(f"v_add_u32 v6, {L_CSP}, v6")
            o(f"v_mov_b32 v7, {L_ZERO}")
            o(f"v_cmp_gt_u32 vcc, 32, v{vLANE}")
            o("v_cndmask_b32 v8, v7, v6, vcc")
            o("v_mov_b32 v9, 256")
            o("v_cndmask_b32 v9, 0, v9, vcc")
            for t in range(5):
                o(f"ds_read_b64 v[{AP+4*t}:{AP+4*t+1}], v8")
                if t < 4: o("v_add_u32 v8, v8, v9")
        def check(o):
            lab = a.uniq("L_spin"); done = a.uniq("L_spind")
            o("s_waitcnt vmcnt(5)")
            o(f"s_mov_b32 s{sT2}, 0")
            o.label(lab)
            o(f"v_and_b32 v2, v{vPOLL}, v{vPOLL+1}")
            for i in range(2, 8): o(f"v_and_b32 v2, v2, v{vPOLL+i}")
            o("v_and_b32 v2, 32, v2")
            o("s_nop 1")
            o(f"v_readfirstlane_b32 s{sT3}, v2")
            o("s_nop 3")
            o(f"s_cmp_eq_u32 s{sT3}, 32")
            o(f"s_cbranch_scc1 {done}")
            o(f"s_add_u32 s{sT2}, s{sT2}, 1")
            o(f"s_cmp_gt_u32 s{sT2}, 200000")
            o(f"s_cbranch_scc1 {done}")
            o("s_sleep 2")
            self.poll_loads(o)
            o("s_waitcnt vmcnt(0)")
            o(f"s_branch {lab}")
            o.label(done)
        post = {
            0: lambda: f_phi(),
            1: lambda: units_from(self.cs_mfma),
            2: lambda: blk_wave0(self.cs_cross),
            4: lambda: blk_wave0(arrival),
            6: lambda: blk_wave0(self.poll_loads),
            7: lambda: f_stats_loads(),
            8: lambda: units_from(build),
            9: lambda: units_from(areads),
        }
        need_extra = {1: ["CS"], 8: ["SL"]}
        sched = {(3, 0): ("w", 0), (3, 1): ("x", 0), (3, 2): ("w", 1), (3, 4): ("x", 1), (0, 0): ("w", 2), (0, 2): ("x", 2), (0, 4): ("x", 3)}
        xdelta_pending = None
        for c in range(10):
            for ks in range(4):
                xf = XF[ks & 1]
                if ks == 3:
                    while fill: drain(8)
                    tags = ([f"D{c+1}"] if c < 9 else []) + need_extra.get(c, [])
                    n = wait_n(tags) if tags else 63
                    if c == 7:
                        a(f"s_waitcnt vmcnt({min(n, 63)}) lgkmcnt(0)")
                        for ln in blk_wave0(check)[0]: a(ln)
                    else:
                        a(f"s_waitcnt vmcnt({min(n, 63)}) lgkmcnt(0)")
                    a("s_barrier")
                    if c < 9:
                        d = XST if (c % 3) != 2 else (-2 * XST) & 0xffffffff
                        a(f"v_add_u32 v{vXA[0]}, {d:#x}, v{vXA[0]}")
                        fill += [[f"v_add_u32 v{vXA[k]}, {d:#x}, v{vXA[k]}"] for k in (1, 2, 3)]
                    if c in post: fill += post[c]()
                for t in range(5):
                    first = (c == 0 and ks == 0)
                    lastk = (c == 9 and ks == 3)
                    a(f"s_waitcnt lgkmcnt({2 * (4 - t) if lastk else (8 if t == 0 else 9)})")
                    cin = "0" if first else f"v[{ACC+16*t}:{ACC+16*t+15}]"
                    a(f"v_mfma_f32_32x32x16_bf16 v[{ACC+16*t}:{ACC+16*t+15}], v[{WF+4*t}:{WF+4*t+3}], v[{xf}:{xf+3}], {cin}")
                    nc, nks = (c, ks + 1) if ks < 3 else (c + 1, 0)
                    if nc < 10:
                        if t == 0: self.rd_x(nks)
                        rdw(nc, nks, t)
                    if (ks, t) in sched:
                        kind, q = sched[(ks, t)]
                        lc = c + 3 if ks == 3 else c + 2
                        if 3 <= lc <= 9:
                            if kind == "w": dw(lc, q)
                            else: dx(lc, q)
                    if ks == 2 and t == 3 and 4 <= c <= 7 and not self.o.get("nowarm"):
                        a(f"buffer_load_dword v{vTCD}, v{vTCH}, {srd(sTCH)}, s{sTCO} offen")
                        a(f"s_add_u32 s{sTCO}, s{sTCO}, s{sTCS}")
                        V("T")
                    drain(3)
        while fill: drain(8)

    def poll_loads(self, o):
        o("v_mov_b32 v2, 0")
        for k in range(4):
            o(f"buffer_load_dwordx2 v[{vPOLL+2*k}:{vPOLL+2*k+1}], v2, {srd(sDBG)}, 0 offen offset:{k*64} sc1")

    def mean_corr(self):
        a = self.a
        a("s_waitcnt lgkmcnt(0)")
        for t in range(5):
            b = AP + 4 * t
            a(f"v_mfma_f32_32x32x16_bf16 v[{ACC+16*t}:{ACC+16*t+15}], v[{b}:{b+3}], v[{BP}:{BP+3}], v[{ACC+16*t}:{ACC+16*t+15}]")

    def arrive(self):
        a = self.a
        lab = a.uniq("L_arr")
        a(f"s_cmp_eq_u32 s{sWAVE}, 0")
        a(f"s_cbranch_scc0 {lab}")
        a("v_mov_b32 v2, 1")
        self.lane0_off(3)
        a(f"buffer_atomic_add v2, v3, {srd(sWS)}, s{sT2} offen")
        a.label(lab)

    def poll2(self, offA, offB, target):
        a = self.a
        lab = a.uniq("L_poll"); done = a.uniq("L_polld")
        a(f"s_mov_b32 s{sT4}, 0")
        a("v_mov_b32 v3, 0")
        a.label(lab)
        a(f"buffer_load_dword v2, v3, {srd(sWS)}, s{offA} offen sc1")
        a(f"buffer_load_dword v4, v3, {srd(sWS)}, s{offB} offen sc1")
        a("s_waitcnt vmcnt(0)")
        a("v_min_u32 v2, v2, v4")
        a("s_nop 0")
        a(f"v_readfirstlane_b32 s{sT5}, v2")
        a("s_nop 3")
        a(f"s_cmp_ge_u32 s{sT5}, {target}")
        a(f"s_cbranch_scc1 {done}")
        a(f"s_add_u32 s{sT4}, s{sT4}, 1")
        a(f"s_cmp_gt_u32 s{sT4}, 300000")
        a(f"s_cbranch_scc1 {done}")
        a("s_sleep 1")
        a(f"s_branch {lab}")
        a.label(done)

    def epi_ffn(self):
        a = self.a
        a("s_barrier")
        self.ts(11)
        pf = self.a.uniq("L_pf")
        a(f"v_mul_f32 v25, {f2u(-LOG2E):#x}, v{vRSTD}")
        a(f"v_lshlrev_b32 v26, 4, v{vLANE}")
        self.p2_pref_begin()
        a(f"s_lshl_b32 s{sT2}, s{sRB}, 3")
        a(f"s_add_u32 s{sT2}, s{sT2}, s{sWAVE}")
        a(f"s_mul_i32 s{sT2}, s{sT2}, 136")
        a(f"s_add_u32 s{sT2}, s{sT2}, s{sT0F}")
        a(f"s_lshl_b32 s{sT2}, s{sT2}, 10")
        a(f"s_cmp_eq_u32 s{sP2OK}, 0")
        a(f"s_cselect_b32 s{sA}, s{sOOB}, s{sA}")
        npf = 0
        for t in range(5):
            A0 = ACC + 16 * t
            T = 64 + 12 * (t & 1)
            blocks = [
                [f"v_mul_f32 v{T+r}, v{A0+r}, v25" for r in range(8)],
                [f"v_exp_f32 v{T+r}, v{T+r}" for r in range(8)],
                [f"v_mul_f32 v{A0+r}, v{A0+r}, v{A0+8+r}" for r in range(8)],
                [f"v_fma_f32 v{T+r}, v{T+r}, v23, v23" for r in range(8)],
                [f"v_rcp_f32 v{T+r}, v{T+r}" for r in range(8)],
                [f"v_mul_f32 v{A0+r}, v{A0+r}, v{T+r}" for r in range(8)],
                [f"v_cvt_pk_bf16_f32 v{T+8+d}, v{A0+2*d}, v{A0+2*d+1}" for d in range(4)],
            ]
            for bi, blk in enumerate(blocks):
                for op in blk: a(op)
                if bi in (0, 1, 3, 4) and npf < 20:
                    self.p2_pref(npf); npf += 1
            if t == 4:
                a(f"s_cmp_ge_u32 s{sJOB}, 16")
                a("s_cbranch_scc1 L_ffn_nost")
                a(f"s_add_u32 s{sT2}, s{sT2}, 4096")
                a(f"buffer_store_dwordx4 v[{T+8}:{T+11}], v26, {srd(sWS)}, s{sT2} offen sc1")
            else:
                a(f"buffer_store_dwordx4 v[{T+8}:{T+11}], v26, {srd(sWS)}, s{sT2} offen offset:{t*1024} sc1")
        a.label("L_ffn_nost")
        self.ts(12 if not self.o.get("prots") else 99)
        a("s_waitcnt vmcnt(0)")
        a("s_barrier")
        a(f"s_lshl_b32 s{sT2}, s{sRB}, 8")
        a(f"s_add_u32 s{sT2}, s{sT2}, {CNT_OFF}")
        self.arrive()
        self.ts(3)

    def softmax10(self, D, E, PK, c1, T):
        a = self.a
        mx, mn, t0, t1, sp, sn = T, T+1, T+2, T+3, T+4, T+5
        a(f"v_max3_f32 v{mx}, v{D}, v{D+1}, v{D+2}")
        a(f"v_min3_f32 v{mn}, v{D}, v{D+1}, v{D+2}")
        for i in (3, 5, 7):
            a(f"v_max3_f32 v{mx}, v{mx}, v{D+i}, v{D+i+1}")
            a(f"v_min3_f32 v{mn}, v{mn}, v{D+i}, v{D+i+1}")
        a(f"v_max_f32 v{mx}, v{mx}, v{D+9}")
        a(f"v_min_f32 v{mn}, v{mn}, v{D+9}")
        a(f"v_mov_b32 v{t0}, v{mx}")
        a(f"v_mov_b32 v{t1}, v{mn}")
        a(f"v_permlane32_swap_b32 v{mx}, v{t0}")
        a(f"v_permlane32_swap_b32 v{mn}, v{t1}")
        a(f"v_max_f32 v{mx}, v{mx}, v{t0}")
        a(f"v_min_f32 v{mn}, v{mn}, v{t1}")
        a(f"v_mul_f32 v{mx}, v{mx}, v{c1}")
        a(f"v_mul_f32 v{mn}, v{mn}, v{c1}")
        for i in range(10):
            a(f"v_fma_f32 v{E+i}, v{D+i}, v{c1}, -v{mx}")
            a(f"v_fma_f32 v{E+10+i}, -v{D+i}, v{c1}, v{mn}")
        for i in range(20): a(f"v_exp_f32 v{E+i}, v{E+i}")
        a(f"v_add_f32 v{sp}, v{E}, v{E+1}")
        a(f"v_add_f32 v{sn}, v{E+10}, v{E+11}")
        for i in range(2, 10):
            a(f"v_add_f32 v{sp}, v{sp}, v{E+i}")
            a(f"v_add_f32 v{sn}, v{sn}, v{E+10+i}")
        a(f"v_mov_b32 v{t0}, v{sp}")
        a(f"v_mov_b32 v{t1}, v{sn}")
        a(f"v_permlane32_swap_b32 v{sp}, v{t0}")
        a(f"v_permlane32_swap_b32 v{sn}, v{t1}")
        a(f"v_add_f32 v{sp}, v{sp}, v{t0}")
        a(f"v_add_f32 v{sn}, v{sn}, v{t1}")
        a(f"v_rcp_f32 v{sp}, v{sp}")
        a(f"v_rcp_f32 v{sn}, v{sn}")
        for i in range(10):
            a(f"v_mul_f32 v{E+i}, v{E+i}, v{sp}")
            a(f"v_mul_f32 v{E+10+i}, v{E+10+i}, v{sn}")
        for i in range(10):
            a(f"v_cvt_pk_bf16_f32 v{PK+i}, v{E+2*i}, v{E+2*i+1}")

    def cvtP(self, P, half):
        a = self.a
        for t in range(5):
            for i in range(2):
                G_ = 2 * t + i
                r = ACC + 16 * t + 8 * half + 4 * i
                a(f"v_cvt_pk_bf16_f32 v{P+2*G_}, v{r}, v{r+1}")
                a(f"v_cvt_pk_bf16_f32 v{P+2*G_+1}, v{r+2}, v{r+3}")
        a(f"v_mov_b32 v{P+20}, 0"); a(f"v_mov_b32 v{P+21}, 0")

    def rd_af(self, idx0, AF):
        for s_ in range(2):
            self.a(f"ds_read_b128 v[{AF+4*s_}:{AF+4*s_+3}], v30 offset:{(idx0+s_)*1024}")
    def feat_mfma(self, D, P, p, AF):
        a = self.a
        G0 = [0, 2, 5, 7][p]
        a(f"v_mfma_f32_32x32x16_bf16 v[{D}:{D+15}], v[{AF}:{AF+3}], v[{P+2*G0}:{P+2*G0+3}], 0")
        a(f"v_mfma_f32_32x32x16_bf16 v[{D}:{D+15}], v[{AF+4}:{AF+7}], v[{P+2*G0+4}:{P+2*G0+7}], v[{D}:{D+15}]")

    def epi_kv(self):
        a = self.a
        P = 64
        D = [104, 120]
        E = 136
        PK = 88
        T = 156
        AFa = [40, 48, 8, 16]
        a(f"v_mul_f32 v25, {f2u(LOG2E):#x}, v{vRSTD}")
        a(f"v_lshlrev_b32 v30, 4, v{vLANE}")
        a(f"v_add_u32 v30, {L_WPHI}, v30")
        self.rd_af(0, 40); self.rd_af(2, 48)
        a(f"v_and_b32 v5, 31, v{vLANE}")
        a(f"s_lshl_b32 s{sT2}, s{sWAVE}, 5")
        a(f"v_add_u32 v5, s{sT2}, v5")
        a(f"v_lshrrev_b32 v6, 5, v{vLANE}")
        a(f"v_mul_u32_u24 v27, {PHI_ROW}, v5")
        a("v_mul_u32_u24 v7, 40, v6")
        a("v_add_u32 v27, v27, v7")
        a(f"v_mul_u32_u24 v28, {V_ROW}, v5")
        a("v_lshl_add_u32 v28, v6, 3, v28")
        a(f"v_add_u32 v28, {L_V}, v28")
        self.cvtP(P, 0)
        a("s_waitcnt lgkmcnt(0)")
        self.feat_mfma(D[0], P, 0, 40)
        self.feat_mfma(D[1], P, 1, 48)
        self.rd_af(4, 40); self.rd_af(6, 48)
        a("s_barrier")
        self.ts(11)
        for t in range(5):
            for i in range(2):
                G_ = 2 * t + i
                r = ACC + 16 * t + 8 + 4 * i
                for e in range(4): a(f"v_mul_f32 v{r+e}, v{r+e}, v{vRSTD}")
                a(f"v_cvt_pk_bf16_f32 v{162+2*(G_&1)}, v{r}, v{r+1}")
                a(f"v_cvt_pk_bf16_f32 v{163+2*(G_&1)}, v{r+2}, v{r+3}")
                a(f"ds_write_b64 v28, v[{162+2*(G_&1)}:{163+2*(G_&1)}] offset:{16*G_}")
        for p in range(4):
            self.softmax10(D[p & 1], E, PK, 25, T)
            if p < 2:
                a("s_waitcnt lgkmcnt(0)")
                self.feat_mfma(D[p & 1], P, p + 2, 40 + 8 * p)
            for i in range(5):
                a(f"ds_write_b64 v27, v[{PK+2*i}:{PK+2*i+1}] offset:{p*80 + i*8}")
        a("s_waitcnt lgkmcnt(0)")
        a("s_barrier")
        self.ts(3)
        a(f"s_lshr_b32 s{sT2}, s{sWAVE}, 1")
        a(f"s_and_b32 s{sT3}, s{sWAVE}, 1")
        a(f"v_lshrrev_b32 v5, 4, v{vLANE}")
        a("v_and_b32 v6, 1, v5")
        a("v_lshrrev_b32 v5, 1, v5")
        a(f"v_bfe_u32 v7, v{vLANE}, 2, 2")
        a("v_lshl_add_u32 v5, v5, 3, v7")
        a(f"v_and_b32 v7, 3, v{vLANE}")
        a(f"s_mul_i32 s{sT4}, s{sT2}, 40")
        a("v_lshlrev_b32 v8, 3, v7")
        a(f"v_add_u32 v8, s{sT4}, v8")
        a(f"s_add_u32 s{sT5}, s{sT4}, 32")
        a(f"v_mov_b32 v9, s{sT5}")
        a("v_cmp_eq_u32 vcc, 0, v6")
        a("v_cndmask_b32 v8, v9, v8, vcc")
        a(f"v_mul_u32_u24 v9, {V_ROW}, v5")
        a("v_add_u32 v8, v8, v9")
        a(f"v_add_u32 v32, {L_V}, v8")
        a("v_cmp_ne_u32 vcc, 0, v7")
        a("v_cndmask_b32 v2, 0, v6, vcc")
        a("v_cmp_eq_u32 vcc, 0, v2")
        a(f"v_mov_b32 v3, {L_ONES}")
        a("v_cndmask_b32 v32, v3, v32, vcc")
        a(f"v_mov_b32 v3, {4*V_ROW}")
        a("v_cndmask_b32 v35, 0, v3, vcc")
        a(f"s_lshl_b32 s{sT5}, s{sT3}, 3")
        a("v_lshl_add_u32 v8, v6, 2, v7")
        a(f"v_add_u32 v8, s{sT5}, v8")
        a("v_min_u32 v8, 9, v8")
        a("v_lshlrev_b32 v8, 3, v8")
        a(f"s_mul_i32 s{sT4}, s{sT2}, 80")
        a(f"v_add_u32 v8, s{sT4}, v8")
        a(f"v_mul_u32_u24 v9, {PHI_ROW}, v5")
        a("v_add_u32 v33, v8, v9")
        a(f"v_add_u32 v34, {8*16*PHI_ROW}, v33")
        KD = 104
        def rd(s_, buf):
            r = 64 + 8 * buf
            a(f"ds_read_b64_tr_b16 v[{r}:{r+1}], v32")
            a("v_add_u32 v32, v32, v35")
            a(f"ds_read_b64_tr_b16 v[{r+2}:{r+3}], v32")
            a("v_lshl_add_u32 v32, v35, 1, v32")
            a("v_add_u32 v32, v32, v35")
            bb, so = (33, s_) if s_ < 8 else (34, s_ - 8)
            a(f"ds_read_b64_tr_b16 v[{r+4}:{r+5}], v{bb} offset:{so*16*PHI_ROW}")
            a(f"ds_read_b64_tr_b16 v[{r+6}:{r+7}], v{bb} offset:{so*16*PHI_ROW + 4*PHI_ROW}")
        rd(0, 0); rd(1, 1); rd(2, 2)
        for s_ in range(16):
            buf = s_ % 3
            r = 64 + 8 * buf
            n = 4 * min(2, 15 - s_)
            a(f"s_waitcnt lgkmcnt({n})")
            c = "0" if s_ == 0 else f"v[{KD}:{KD+15}]"
            a(f"v_mfma_f32_32x32x16_bf16 v[{KD}:{KD+15}], v[{r}:{r+3}], v[{r+4}:{r+7}], {c}")
            if s_ + 3 < 16: rd(s_ + 3, buf)
        a(f"v_and_b32 v5, 31, v{vLANE}")
        a(f"s_lshl_b32 s{sT5}, s{sT3}, 5")
        a(f"v_add_u32 v5, s{sT5}, v5")
        a(f"v_lshrrev_b32 v6, 5, v{vLANE}")
        a("v_mul_u32_u24 v7, 160, v6")
        a("v_add_u32 v7, v7, v5")
        a("v_lshlrev_b32 v7, 2, v7")
        a(f"v_mov_b32 v8, {OOB}")
        a("v_cmp_gt_u32 vcc, 40, v5")
        a("v_cndmask_b32 v7, v8, v7, vcc")
        a("v_cmp_eq_u32 vcc, 0, v6")
        a("v_cndmask_b32 v9, v8, v7, vcc")
        a(f"s_lshl_b32 s{sT4}, s{sJOB}, 2")
        a(f"s_add_u32 s{sT4}, s{sT4}, s{sT2}")
        a(f"s_lshl_b32 s{sT4}, s{sT4}, 12")
        a(f"s_add_u32 s{sT4}, s{sT4}, {KV_OFF}")
        for r in range(12):
            off = (8 * (r >> 2) + (r & 3)) * 160
            v = 7 if r <= 8 else 9
            a(f"buffer_atomic_add_f32 v{KD+r}, v{v}, {srd(sWS)}, s{sT4} offen offset:{off}")
        a("s_barrier")
        self.p2_pref_begin()
        a(f"s_cmp_eq_u32 s{sP2OK}, 0")
        a(f"s_cselect_b32 s{sA}, s{sOOB}, s{sA}")
        NEARLY = 4
        for i in range(NEARLY): self.p2_pref(i)
        a(f"s_waitcnt vmcnt({NEARLY})")
        a("s_barrier")
        a(f"s_lshl_b32 s{sT2}, s{sJOB}, 8")
        a(f"s_add_u32 s{sT2}, s{sT2}, {CNT_OFF + 16*256}")
        self.arrive()
        self.ts(4)
        for i in range(NEARLY, 20): self.p2_pref(i)

    def epi_q(self):
        a = self.a
        P0, P1 = 60, 82
        D = [104, 120]
        E = 136
        T = 32
        PH = 160
        a(f"v_mul_f32 v25, {f2u(LOG2E):#x}, v{vRSTD}")
        a(f"v_lshlrev_b32 v30, 4, v{vLANE}")
        a(f"v_add_u32 v30, {L_WPHI}, v30")
        self.rd_af(0, 40); self.rd_af(2, 48)
        self.cvtP(P0, 0)
        self.cvtP(P1, 1)
        a("s_waitcnt lgkmcnt(0)")
        self.feat_mfma(D[0], P0, 0, 40)
        self.feat_mfma(D[1], P0, 1, 48)
        for h in range(8):
            hn = h + 2
            if hn < 8: self.rd_af((hn >> 2) * 8 + 2 * (hn & 3), 40 + 8 * (hn & 1))
            self.softmax10(D[h & 1], E, PH + 12 * h, 25, T)
            a(f"v_mov_b32 v{PH+12*h+10}, 0"); a(f"v_mov_b32 v{PH+12*h+11}, 0")
            if hn < 8:
                a("s_waitcnt lgkmcnt(0)")
                self.feat_mfma(D[h & 1], P0 if hn < 4 else P1, hn & 3, 40 + 8 * (hn & 1))
        self.ts(3)
        a(f"v_bfe_u32 v2, v{vLANE}, 3, 2")
        a(f"v_and_b32 v3, 3, v{vLANE}")
        a("v_lshl_add_u32 v2, v2, 2, v3")
        a(f"v_bfe_u32 v3, v{vLANE}, 2, 1")
        a("v_lshl_add_u32 v3, v2, 1, v3")
        a("v_mov_b32 v4, 20")
        a("v_cmp_eq_u32 vcc, 10, v2")
        a("v_cndmask_b32 v3, v3, v4, vcc")
        a("v_mul_u32_u24 v3, 160, v3")
        a(f"v_lshrrev_b32 v4, 5, v{vLANE}")
        a("v_mul_u32_u24 v4, 80, v4")
        a("v_add_u32 v3, v3, v4")
        a(f"v_mov_b32 v4, {OOB}")
        a("v_cmp_gt_u32 vcc, 11, v2")
        a("v_cndmask_b32 v38, v4, v3, vcc")
        a(f"v_lshlrev_b32 v39, 4, v{vLANE}")
        a(f"s_cmp_eq_u32 s{sWAVE}, 0")
        a("s_cbranch_scc0 L_q_nopoll")
        a(f"s_lshl_b32 s{sT2}, s{sJOB}, 9")
        a(f"s_add_u32 s{sT2}, s{sT2}, {CNT_OFF + 16*256}")
        a(f"s_add_u32 s{sT3}, s{sT2}, 256")
        self.poll2(sT2, sT3, 8)
        a.label("L_q_nopoll")
        a("s_barrier")
        self.ts(4)
        a(f"s_lshl_b32 s{sT4}, s{sJOB}, 3")
        a(f"s_add_u32 s{sT4}, s{sT4}, s{sWAVE}")
        a(f"s_lshl_b32 s{sT4}, s{sT4}, 12")
        a(f"s_add_u32 s{sT4}, s{sT4}, {KV_OFF}")
        for s_ in range(3):
            a(f"buffer_load_dwordx4 v[{104+8*s_}:{107+8*s_}], v38, {srd(sWS)}, s{sT4} offen offset:{32*s_} sc1")
            a(f"buffer_load_dwordx4 v[{108+8*s_}:{111+8*s_}], v38, {srd(sWS)}, s{sT4} offen offset:{32*s_+16} sc1")
        a(f"s_mul_i32 s{sT5}, s{sWAVE}, 3072")
        a(f"v_add_u32 v5, s{sT5}, v39")
        for s_ in range(3):
            a(f"s_waitcnt vmcnt({4-2*s_})")
            for d in range(4):
                a(f"v_cvt_pk_bf16_f32 v{136+4*s_+d}, v{104+8*s_+2*d}, v{105+8*s_+2*d}")
            a(f"ds_write_b128 v5, v[{136+4*s_}:{139+4*s_}] offset:{L_KVA + s_*1024}")
        a("s_waitcnt lgkmcnt(0)")
        a("s_barrier")
        OF = 60
        def rdA(h):
            b = 104 + 12 * (h & 1)
            for s_ in range(3): a(f"ds_read_b128 v[{b+4*s_}:{b+4*s_+3}], v39 offset:{L_KVA + (h*3+s_)*1024}")
        OD = [128, 144]
        a(f"s_lshl_b32 s{sT2}, s{sRB}, 3")
        a(f"s_add_u32 s{sT2}, s{sT2}, s{sWAVE}")
        a(f"s_mul_i32 s{sT2}, s{sT2}, 136")
        a(f"s_mul_i32 s{sT3}, s{sJOB}, 10")
        a(f"s_add_u32 s{sT2}, s{sT2}, s{sT3}")
        a(f"s_add_u32 s{sT2}, s{sT2}, 96")
        a(f"s_lshl_b32 s{sT2}, s{sT2}, 10")
        rdA(0)
        stored = 0
        def stores(upto):
            nonlocal stored
            while stored < upto:
                f = stored
                if f and f % 4 == 0: a(f"s_add_u32 s{sT2}, s{sT2}, 4096")
                a(f"buffer_store_dwordx4 v[{OF+4*f}:{OF+4*f+3}], v39, {srd(sWS)}, s{sT2} offen offset:{(f&3)*1024} sc1")
                stored += 1
        for h in range(8):
            if h < 7: rdA(h + 1)
            b = 104 + 12 * (h & 1)
            a(f"s_waitcnt lgkmcnt({3 if h < 7 else 0})")
            d = OD[h & 1]
            for s_ in range(3):
                c = "0" if s_ == 0 else f"v[{d}:{d+15}]"
                a(f"v_mfma_f32_32x32x16_bf16 v[{d}:{d+15}], v[{b+4*s_}:{b+4*s_+3}], v[{PH+12*h+4*s_}:{PH+12*h+4*s_+3}], {c}")
            if h >= 1:
                self.o_finish(OD[(h - 1) & 1], OF + 5 * (h - 1))
                stores((5 * h) // 4)
        self.o_finish(OD[7 & 1], OF + 35)
        stores(10)
        a("s_waitcnt vmcnt(0)")
        a("s_barrier")
        a(f"s_lshl_b32 s{sT2}, s{sRB}, 8")
        a(f"s_add_u32 s{sT2}, s{sT2}, {CNT_OFF + 8*256}")
        self.arrive()
        self.ts(5)

    def o_finish(self, d, dst):
        a = self.a
        a(f"v_add_f32 v37, {f2u(1e-6):#x}, v{d+10}")
        a("v_rcp_f32 v37, v37")
        for i in range(10): a(f"v_mul_f32 v{d+i}, v{d+i}, v37")
        for i in range(5): a(f"v_cvt_pk_bf16_f32 v{dst+i}, v{d+2*i}, v{d+2*i+1}")

    def p2_main(self):
        a = self.a
        D = self.o.get("depth", 6)
        a(f"s_cmp_eq_u32 s{sP2OK}, 0")
        a("s_cbranch_scc1 L_end")
        self.ts(6)
        a(f"s_mul_i32 s{sT2}, s{sRB2}, 96")
        a(f"s_lshr_b32 s{sC}, s{sT2}, 8")
        a(f"s_add_u32 s{sT2}, s{sT2}, 95")
        a(f"s_min_u32 s{sT2}, s{sT2}, 2047")
        a(f"s_lshr_b32 s{sD}, s{sT2}, 8")
        a(f"s_mul_i32 s{sTTG}, s{sRB2}, 3")
        vL16, vRES, vA0, vA1 = 12, 13, 10, 11
        XR = 24
        a(f"v_lshlrev_b32 v{vL16}, 4, v{vLANE}")
        self.build_srd(sW, PX, 2621440)
        a(f"s_lshr_b32 s{sTT}, s{sWAVE}, 1")
        a(f"s_and_b32 s{sKH}, s{sWAVE}, 1")
        a(f"s_add_u32 s{sT5}, s{sTTG}, s{sTT}")
        a(f"s_mul_i32 s{sT5}, s{sT5}, {32*1280}")
        a(f"s_lshl_b32 s{sTMP}, s{sCB}, 7")
        a(f"s_add_u32 s{sT5}, s{sT5}, s{sTMP}")
        a(f"s_lshl_b32 s{sTMP}, s{sKH}, 6")
        a(f"s_add_u32 s{sWCH}, s{sT5}, s{sTMP}")
        a(f"s_cmp_ge_u32 s{sWAVE}, 6")
        a(f"s_cselect_b32 s{sWCH}, s{sOOB}, s{sWCH}")
        a(f"v_and_b32 v2, 31, v{vLANE}")
        a("v_mul_u32_u24 v2, 1280, v2")
        a(f"v_lshrrev_b32 v3, 5, v{vLANE}")
        a(f"v_lshl_add_u32 v{vRES}, v3, 3, v2")
        for q in range(4):
            a(f"buffer_load_dwordx2 v[{XR+2*q}:{XR+2*q+1}], v{vRES}, {srd(sW)}, s{sWCH} offen offset:{q*16}")
        a(f"s_cmp_ge_u32 s{sWAVE}, 4")
        a("s_cbranch_scc1 L_p2_helper")
        HB, WB, PA = 84, 64, 160
        self.build_srd(sX, PWS, HO_SIZE)
        sH = [sXOFF, sXDST, sWDST]
        sO = [sWBEG, sXBEG, sWEND]
        for tt in range(3):
            a(f"s_add_u32 s{sT2}, s{sTTG}, {tt}")
            a(f"s_mul_i32 s{sT2}, s{sT2}, 136")
            a(f"s_mul_i32 s{sT3}, s{sWAVE}, 24")
            a(f"s_add_u32 s{sT3}, s{sT3}, s{sT2}")
            a(f"s_lshl_b32 s{sH[tt]}, s{sT3}, 10")
            a(f"s_mul_i32 s{sT3}, s{sWAVE}, 10")
            a(f"s_add_u32 s{sT3}, s{sT3}, s{sT2}")
            a(f"s_add_u32 s{sT3}, s{sT3}, 96")
            a(f"s_lshl_b32 s{sO[tt]}, s{sT3}, 10")
        a(f"s_lshl_b32 s{sTMP}, s{sCB}, 7")
        a(f"s_mul_i32 s{sWOFF}, s{sWAVE}, {24*16*1280}")
        a(f"s_add_u32 s{sWOFF}, s{sWOFF}, s{sTMP}")
        a(f"s_mul_i32 s{sXEND}, s{sWAVE}, {10*16*1280}")
        a(f"s_add_u32 s{sXEND}, s{sXEND}, s{sTMP}")
        a(f"s_mul_i32 s{sRST}, s{sWAVE}, 40960")
        a(f"v_lshrrev_b32 v2, 5, v{vLANE}")
        a(f"v_bfe_u32 v3, v{vLANE}, 2, 2")
        a("v_lshl_add_u32 v2, v2, 3, v3")
        a("v_lshlrev_b32 v2, 7, v2")
        a(f"v_bfe_u32 v4, v{vLANE}, 4, 1")
        a("v_lshlrev_b32 v4, 1, v4")
        a(f"v_bfe_u32 v5, v{vLANE}, 1, 1")
        a("v_add_u32 v4, v4, v5")
        a("v_bfe_u32 v5, v3, 1, 1")
        a("v_lshlrev_b32 v5, 2, v5")
        a("v_xor_b32 v4, v4, v5")
        a("v_lshl_add_u32 v2, v4, 4, v2")
        a(f"v_and_b32 v5, 1, v{vLANE}")
        a("v_lshl_add_u32 v2, v5, 3, v2")
        a(f"v_add_u32 v{vA0}, s{sRST}, v2")
        a(f"v_xor_b32 v{vA1}, 64, v{vA0}")
        for i in range(4): a(f"v_mov_b32 v{32+i}, v{vP2+i}")
        a("s_waitcnt vmcnt(0)")
        a("s_barrier")
        self.ts(7)
        vm = []
        def V(t): vm.append(t)
        def wait_n(tags):
            idx = [i for i, t in enumerate(vm) if t in tags]
            return len(vm) - 1 - max(idx) if idx else 63
        hn = [0]
        def hload(n):
            assert n == hn[0]; hn[0] += 1
            for tt in range(3):
                if n < 24: base, k = sH[tt], n
                else: base, k = sO[tt], n - 24
                if k and k % 4 == 0: a(f"s_add_u32 s{base}, s{base}, 4096")
                b = HB + 12 * (n % D) + 4 * tt
                a(f"buffer_load_dwordx4 v[{b}:{b+3}], v{vL16}, {srd(sX)}, s{base} offen offset:{(k&3)*1024}" + ("" if self.o.get("p2plain") else " sc1"))
                V(f"H{n}")
        def refill(m):
            slot = m - 20
            for hh in range(2):
                a(f"s_add_u32 m0, s{sRST}, {slot * 2048 + hh * 1024}")
                if m < 24:
                    a(f"s_add_u32 s{sT5}, s{sWOFF}, {m * 16 * 1280}")
                    a(f"buffer_load_dwordx4 v{32+hh}, {srd(sT0)}, s{sT5} offen lds")
                else:
                    a(f"s_add_u32 s{sT5}, s{sXEND}, {(m - 24) * 16 * 1280}")
                    a(f"buffer_load_dwordx4 v{34+hh}, {srd(sT1)}, s{sT5} offen lds")
                V(f"W{m}")
        def wread(n):
            if n >= 34: return
            slot = n % 20
            if n >= 20: a(f"s_waitcnt vmcnt({min(wait_n([f'W{n}']), 63)})")
            for nt in range(2):
                b = WB + 8 * (n & 1) + 4 * nt
                va = vA0 if nt == 0 else vA1
                a(f"ds_read_b64_tr_b16 v[{b}:{b+1}], v{va} offset:{slot*2048}")
                a(f"ds_read_b64_tr_b16 v[{b+2}:{b+3}], v{va} offset:{slot*2048 + 512}")
        for n in range(D): hload(n)
        wread(0); wread(1)
        OST = 24
        for n in range(34):
            if n == OST:
                a("s_barrier")
                while hn[0] < min(34, n + D): hload(hn[0])
            a(f"s_waitcnt vmcnt({min(wait_n([f'H{n}']), 63)}) lgkmcnt({4 if n < 33 else 0})")
            hb = HB + 12 * (n % D)
            for nt in range(2):
                b = WB + 8 * (n & 1) + 4 * nt
                for tt in range(3):
                    ac = PA + 16 * (tt * 2 + nt)
                    cin = "0" if n == 0 else f"v[{ac}:{ac+15}]"
                    a(f"v_mfma_f32_32x32x16_bf16 v[{ac}:{ac+15}], v[{b}:{b+3}], v[{hb+4*tt}:{hb+4*tt+3}], {cin}")
            m = n + D
            if m < 34 and m == hn[0] and (m < 24 or n >= OST): hload(m)
            if n + 20 < 34: refill(n + 20)
            wread(n + 2)
        self.ts(8)
        a("s_barrier")
        a(f"s_mul_i32 s{sT2}, s{sWAVE}, {6*4096}")
        a(f"v_add_u32 v2, s{sT2}, v{vL16}")
        for tau in range(6):
            for q in range(4):
                a(f"ds_write_b128 v2, v[{PA+16*tau+4*q}:{PA+16*tau+4*q+3}] offset:{tau*4096 + q*1024}")
        a("s_waitcnt lgkmcnt(0)")
        a("s_branch L_p2_fin")
        a.label("L_p2_helper")
        a(f"s_cmp_eq_u32 s{sWAVE}, 4")
        a("s_cbranch_scc0 L_p2_h1")
        a(f"s_lshl_b32 s{sT2}, s{sC}, 8")
        a(f"s_add_u32 s{sT2}, s{sT2}, {CNT_OFF}")
        a(f"s_lshl_b32 s{sT3}, s{sD}, 8")
        a(f"s_add_u32 s{sT3}, s{sT3}, {CNT_OFF}")
        self.poll2(sT2, sT3, 20)
        a.label("L_p2_h1")
        a("s_waitcnt vmcnt(0)")
        a("s_barrier")
        if self.o.get("noopoll"): a("s_branch L_p2_h2")
        a(f"s_cmp_eq_u32 s{sWAVE}, 4")
        a("s_cbranch_scc0 L_p2_h2")
        a(f"s_lshl_b32 s{sT2}, s{sC}, 8")
        a(f"s_add_u32 s{sT2}, s{sT2}, {CNT_OFF + 8*256}")
        a(f"s_lshl_b32 s{sT3}, s{sD}, 8")
        a(f"s_add_u32 s{sT3}, s{sT3}, {CNT_OFF + 8*256}")
        self.poll2(sT2, sT3, 4)
        a.label("L_p2_h2")
        a("s_barrier")
        a("s_barrier")
        a.label("L_p2_fin")
        a("s_barrier")
        a(f"s_cmp_ge_u32 s{sWAVE}, 6")
        a("s_cbranch_scc1 L_end")
        PA2 = 160
        a(f"s_lshl_b32 s{sT2}, s{sWAVE}, 12")
        a(f"v_add_u32 v2, s{sT2}, v{vL16}")
        for kq in range(4):
            for q in range(4):
                off = kq * 6 * 4096 + q * 1024
                if off < 65536: a(f"ds_read_b128 v[{PA2+16*kq+4*q}:{PA2+16*kq+4*q+3}], v2 offset:{off}")
                else:
                    if kq == 3 and q == 0: a("v_add_u32 v3, 0x10000, v2")
                    a(f"ds_read_b128 v[{PA2+16*kq+4*q}:{PA2+16*kq+4*q+3}], v3 offset:{off - 65536}")
        self.build_srd(sT0, POUT, 2621440)
        a(f"v_and_b32 v4, 31, v{vLANE}")
        a("v_mul_u32_u24 v4, 1280, v4")
        a(f"v_lshrrev_b32 v5, 5, v{vLANE}")
        a("v_lshl_add_u32 v4, v5, 4, v4")
        for q in range(4):
            for h2 in range(2):
                x = XR + 2 * q + h2
                a(f"v_lshlrev_b32 v{64+4*q+2*h2}, 16, v{x}")
                a(f"v_and_b32 v{64+4*q+2*h2+1}, 0xffff0000, v{x}")
        a("s_waitcnt lgkmcnt(8)")
        for i in range(16): a(f"v_add_f32 v{PA2+i}, v{PA2+i}, v{PA2+16+i}")
        for i in range(16): a(f"v_add_f32 v{PA2+i}, v{PA2+i}, v{64+i}")
        a("s_waitcnt lgkmcnt(0)")
        for i in range(16): a(f"v_add_f32 v{PA2+32+i}, v{PA2+32+i}, v{PA2+48+i}")
        for i in range(16): a(f"v_add_f32 v{PA2+i}, v{PA2+i}, v{PA2+32+i}")
        O = 84
        for q in range(4):
            a(f"v_cvt_pk_bf16_f32 v{O+2*q}, v{PA2+4*q}, v{PA2+4*q+1}")
            a(f"v_cvt_pk_bf16_f32 v{O+2*q+1}, v{PA2+4*q+2}, v{PA2+4*q+3}")
        for pr in range(2):
            a(f"v_permlane32_swap_b32 v{O+4*pr}, v{O+4*pr+2}")
            a(f"v_permlane32_swap_b32 v{O+4*pr+1}, v{O+4*pr+3}")
        for pr in range(2):
            a(f"buffer_store_dwordx4 v[{O+4*pr}:{O+4*pr+3}], v4, {srd(sT0)}, s{sWCH} offen offset:{pr*32} sc1")
        self.ts(9)
        a("s_branch L_end")

    def gen(self):
        a = self.a
        self.prologue()
        self.mainloop()
        self.ts(2)
        if self.o.get("cyc"):
            a("s_memtime s[26:27]")
            self.ts(15, src=26)
        if self.o.get("loopts"):
            a(f"s_lshl_b32 s{sT2}, s2, 3")
            a(f"s_add_u32 s{sT2}, s{sT2}, s{sWAVE}")
            a(f"s_lshl_b32 s{sT2}, s{sT2}, 8")
            a(f"s_add_u32 s{sT2}, s{sT2}, {DBG_OFF + 256*8*64}")
            a(f"v_lshlrev_b32 v2, 2, v{vLANE}")
            a(f"buffer_store_dword v125, v2, {srd(sWS)}, s{sT2} offen")
        self.mean_corr()
        a(f"s_cmp_eq_u32 s{sTYPE}, 2")
        a("s_cbranch_scc1 L_ffn")
        a(f"s_cmp_eq_u32 s{sTYPE}, 1")
        a("s_cbranch_scc1 L_q")
        self.epi_kv()
        a("s_branch L_p2")
        a.label("L_q")
        self.epi_q()
        a("s_branch L_end")
        a.label("L_ffn")
        self.epi_ffn()
        a.label("L_p2")
        if self.o.get("nop2"):
            a("s_branch L_end")
        self.p2_main()
        lines = a.l + ["s_branch L_end"] + self.ool.l + ["L_end:", "s_endpgm"]
        lines, added = pad_hazards(lines)
        body = "\n".join(("    " + l if not l.endswith(":") else l) for l in lines)
        hdr = open("cdna_kernels/" + KNAME[:-7] + ".s.ref").read().split("; Override launch geometry")[0]
        txt = hdr + f"""; Fused single-launch kernel: LN + QKV/FFN GEMM + hedgehog linear attention + output GEMM (generated by my own script).
; @launch grid=(256,1,1) block=(512,1,1) lds={LDS_TOTAL}
.amdgcn_target "amdgcn-amd-amdhsa--gfx950"
.text
.globl {KNAME}
.p2align 8
.type {KNAME},@function
{KNAME}:
{body}
.section .rodata,"a"
.p2align 6
.amdhsa_kernel {KNAME}
  .amdhsa_next_free_vgpr 256
  .amdhsa_next_free_sgpr 102
  .amdhsa_accum_offset 256
  .amdhsa_group_segment_fixed_size 0
  .amdhsa_kernarg_size 88
  .amdhsa_user_sgpr_count 2
  .amdhsa_user_sgpr_kernarg_segment_ptr 1
  .amdhsa_system_sgpr_workgroup_id_x 1
.end_amdhsa_kernel
"""
        return txt, added

if __name__ == "__main__":
    import argparse
    ap = argparse.ArgumentParser()
    ap.add_argument("-o", default="k.s")
    for f in ("dev", "ts", "nop2", "p2plain", "noopoll", "nowarm", "p2ts", "loopts", "prots", "xw", "nocs", "notouch", "cyc", "nostag", "x_nodma", "x_notch", "x_lg8", "x_nospec", "cpf"): ap.add_argument("--" + f, action="store_true")
    ap.add_argument("--tsset", default=None)
    ap.add_argument("--depth", type=int, default=6)
    ap.add_argument("--specmask", type=lambda x: int(x, 0), default=None)
    args = ap.parse_args()
    o = dict(dev=args.dev or args.ts, ts=args.ts, nop2=args.nop2, p2plain=args.p2plain, noopoll=args.noopoll, nowarm=args.nowarm, depth=args.depth, p2ts=args.p2ts, loopts=args.loopts, prots=args.prots, xw=args.xw, nocs=args.nocs, notouch=args.notouch, cyc=args.cyc, nostag=args.nostag, x_nodma=args.x_nodma, x_notch=args.x_notch, x_lg8=args.x_lg8, x_nospec=args.x_nospec, cpf=args.cpf, specmask=args.specmask)
    if args.tsset: o["tsset"] = set(int(x) for x in args.tsset.split(","))
    g = G(o)
    txt, added = g.gen()
    open(args.o, "w").write(txt)
    print("written", args.o, "lines", txt.count("\n"), "hazard pad states", added)
```

```python
import sys, struct
sys.path.insert(0, "dev")
from asmlib import Asm, pad_hazards

KNAME = "parallel_sum__linear_kernel_hedgehog__swiglu_ffn__prompt_kernel"

HO_TT = 136 * 1024
HO_SIZE = 64 * HO_TT
KV_OFF = HO_SIZE
KV_SIZE = 32 * 4096
ST_OFF = KV_OFF + KV_SIZE
ST_SIZE = 2048 * 8
CNT_OFF = ST_OFF + ST_SIZE
CSP_OFF = CNT_OFF + 24 * 256
CSP_SIZE = 32 * 8 * 640
WS_SIZE = CSP_OFF + CSP_SIZE
DBG_OFF = WS_SIZE
DBG_SIZE = 256 * 8 * 64 + 256 * 8 * 256 + 4096
OOB = 0x40000000
LOG2E = 1.4426950408889634

XST = 32768
WARR = 10240
WA1 = WARR + 128
WST = 2 * WARR + 128
WBASE = 3 * XST
L_ZERO = WBASE + 3 * WST
L_ONES = L_ZERO + 16
L_CSP = L_ZERO + 128
L_DUMMY = L_CSP + 2560
LDS_TOTAL = 163840
assert L_DUMMY + 1024 == LDS_TOTAL
L_WPHI = 122880
L_PHI = 0
PHI_ROW = 320
L_V = 81920
V_ROW = 160
L_KVA = 0

PX, PQKV, PPHI, PWO, PBX, PWG, PWU, PWD, POUT, PDBG, PWS = 4, 6, 8, 10, 12, 14, 16, 18, 20, 22, 24
sX, sW, sWS, sDBG, sT0, sT1 = 28, 32, 36, 40, 44, 48
sWAVE, sRB, sTYPE, sJOB, sJIDX, sC = 52, 53, 54, 55, 56, 57
sXOFF, sXDST, sTMP, sWOFF, sWDST = 58, 59, 60, 61, 62
sSTRIDE, sWSTp, sWSTm, sXSTp, sXSTm, sMASK = 63, 64, 65, 66, 67, 68
sWEND, sXEND, sWBEG, sXBEG, sRST, sDW, sDX, sWCH = 69, 70, 71, 72, 73, 74, 75, 76
sW3F, sT2, sT3, sT4, sT5, sOOB, sSPEC = 77, 78, 79, 80, 81, 82, 83
sKH, sTT, sXCD, sTTG = 84, 85, 86, 87
sRB2, sCB = 88, 89
sTS = 90
sP2OK = 93
sA, sT0F, sE, sD = 94, 95, 96, 97
sENT = 100
sTCH = 12
sTCO, sTCS, sTCB, sTCN = 16, 17, 6, 7
vTCH = 9 + 12
vTCD = 123

def srd(r): return f"s[{r}:{r+3}]"
def f2u(x): return struct.unpack("<I", struct.pack("<f", x))[0]

vLANE = 1
vXA = [10, 11, 12, 13]
vWA = 14
vXS = [16, 17]
vWS = [18, 19, 20]
vSTAT = 22
vRSTD = 24
vPOLL = 24
AP = 32
WPHI = 52
BP = 60
CSL = 64
vP2 = 100
WRAW = 104
XF = [128, 132]
WF = 136
ACC = 176

class G:
    def __init__(self, opts):
        self.a = Asm()
        self.o = opts
        self.ool = Asm()
        self.ool._n = 100000

    def build_srd(self, r, ptr, nbytes, a=None):
        a = a or self.a
        a(f"s_mov_b32 s{r}, s{ptr}")
        a(f"s_mov_b32 s{r+1}, s{ptr+1}")
        a(f"s_mov_b32 s{r+2}, {nbytes}")
        a(f"s_mov_b32 s{r+3}, 0x00020000")

    def ts(self, idx, a=None, entry=False, src=None):
        if not self.o.get("ts"): return
        if self.o.get("tsset") is not None and idx not in self.o["tsset"]: return
        a = a or self.a
        if src is not None:
            a("s_waitcnt lgkmcnt(0)")
            a(f"s_mov_b32 s{sTS}, s{src}")
        elif entry: a(f"s_mov_b32 s{sTS}, s{sENT}")
        else: a(f"s_memrealtime s[{sTS}:{sTS+1}]")
        a(f"s_lshl_b32 s{sTS+2}, s2, 3")
        a(f"s_add_u32 s{sTS+2}, s{sTS+2}, s{sWAVE}")
        a(f"s_lshl_b32 s{sTS+2}, s{sTS+2}, 6")
        a(f"s_add_u32 s{sTS+2}, s{sTS+2}, {DBG_OFF + idx*4}")
        a(f"v_mov_b32 v3, {OOB}")
        a(f"v_cmp_eq_u32 vcc, 0, v{vLANE}")
        a(f"v_cndmask_b32 v3, v3, v{vLANE}, vcc")
        a("s_waitcnt lgkmcnt(0)")
        a(f"v_mov_b32 v2, s{sTS}")
        a(f"buffer_store_dword v2, v3, {srd(sWS)}, s{sTS+2} offen")
    def tsq(self, k):
        self.a(f"s_memrealtime s[{2*(k-20)+4}:{2*(k-20)+5}]")
    def nts(self, idxs):
        if not self.o.get("ts"): return 0
        return sum(1 for i in idxs if self.o.get("tsset") is None or i in self.o["tsset"])

    def xlane_sum(self, v, t, a=None):
        a = a or self.a
        a(f"v_mov_b32 v{t}, v{v}")
        a(f"v_permlane16_swap_b32 v{v}, v{t}")
        a(f"v_add_f32 v{v}, v{v}, v{t}")
        a(f"v_mov_b32 v{t}, v{v}")
        a(f"v_permlane32_swap_b32 v{v}, v{t}")
        a(f"v_add_f32 v{v}, v{v}, v{t}")
    def wave_sum(self, v, t):
        a = self.a
        for r in (8, 4, 2, 1):
            a(f"v_add_f32_dpp v{v}, v{v}, v{v} row_ror:{r} row_mask:0xf bank_mask:0xf")
        self.xlane_sum(v, t)

    def lane0_off(self, dst, a=None):
        a = a or self.a
        a(f"v_mov_b32 v{dst}, {OOB}")
        a(f"v_cmp_eq_u32 vcc, 0, v{vLANE}")
        a(f"v_cndmask_b32 v{dst}, v{dst}, v{vLANE}, vcc")

    def prologue(self):
        a = self.a
        if self.o.get("ts"): a(f"s_memrealtime s[{sENT}:{sENT+1}]")
        a(f"s_load_dwordx16 s[4:19], s[0:1], 0")
        a(f"s_load_dwordx4 s[20:23], s[0:1], 64")
        a(f"s_load_dwordx2 s[24:25], s[0:1], 80")
        a("s_cmp_ge_u32 s2, 256")
        a("s_cbranch_scc1 L_end")
        a("v_lshrrev_b32 v2, 6, v0")
        a(f"v_and_b32 v{vLANE}, 63, v0")
        a(f"v_readfirstlane_b32 s{sWAVE}, v2")
        a(f"s_and_b32 s{sXCD}, s2, 7")
        a(f"s_lshr_b32 s{sT2}, s2, 3")
        a(f"s_and_b32 s{sRB}, s{sXCD}, 1")
        a(f"s_lshl_b32 s{sRB}, s{sRB}, 2")
        a(f"s_and_b32 s{sT3}, s{sT2}, 3")
        a(f"s_add_u32 s{sRB}, s{sRB}, s{sT3}")
        a(f"s_lshr_b32 s{sD}, s{sT2}, 2")
        a(f"s_lshr_b32 s{sE}, s{sXCD}, 1")
        a(f"s_lshl_b32 s{sJIDX}, s{sE}, 3")
        a(f"s_add_u32 s{sJIDX}, s{sJIDX}, s{sD}")
        a(f"s_mul_i32 s{sT3}, s{sE}, 5")
        a(f"s_add_u32 s{sT3}, s{sT3}, s{sD}")
        a(f"s_sub_u32 s{sJOB}, s{sT3}, 3")
        a(f"s_mov_b32 s{sTYPE}, 2")
        a(f"s_cmp_eq_u32 s{sD}, 2")
        a(f"s_cselect_b32 s{sTYPE}, 1, s{sTYPE}")
        a(f"s_cselect_b32 s{sJOB}, s{sE}, s{sJOB}")
        a(f"s_lshl_b32 s{sT3}, s{sE}, 1")
        a(f"s_add_u32 s{sT3}, s{sT3}, s{sD}")
        a(f"s_cmp_lt_u32 s{sD}, 2")
        a(f"s_cselect_b32 s{sTYPE}, 0, s{sTYPE}")
        a(f"s_cselect_b32 s{sJOB}, s{sT3}, s{sJOB}")
        a(f"s_lshr_b32 s{sA}, s{sWAVE}, 2")
        a(f"s_mul_i32 s{sT3}, s{sJOB}, 5")
        a(f"s_lshl_b32 s{sT4}, s{sJOB}, 2")
        a(f"s_add_u32 s{sT4}, s{sT4}, 16")
        a(f"s_cmp_lt_u32 s{sJOB}, 16")
        a(f"s_cselect_b32 s{sT0F}, s{sT3}, s{sT4}")
        a(f"s_lshl_b32 s{sWOFF}, s{sT0F}, 5")
        a(f"s_mul_i32 s{sT3}, s{sJOB}, 160")
        a(f"s_mul_i32 s{sT4}, s{sA}, 1280")
        a(f"s_add_u32 s{sT3}, s{sT3}, s{sT4}")
        a(f"s_add_u32 s{sT3}, s{sT3}, 1280")
        a(f"s_cmp_eq_u32 s{sTYPE}, 0")
        a(f"s_cselect_b32 s{sWOFF}, s{sT3}, s{sWOFF}")
        a(f"s_mul_i32 s{sT3}, s{sJOB}, 320")
        a(f"s_mul_i32 s{sT4}, s{sA}, 160")
        a(f"s_add_u32 s{sT3}, s{sT3}, s{sT4}")
        a(f"s_cmp_eq_u32 s{sTYPE}, 1")
        a(f"s_cselect_b32 s{sWOFF}, s{sT3}, s{sWOFF}")
        a(f"s_movk_i32 s{sSTRIDE}, 3840")
        a(f"s_cmp_eq_u32 s{sTYPE}, 2")
        a(f"s_cselect_b32 s{sSTRIDE}, 3072, s{sSTRIDE}")
        a(f"s_lshl_b32 s{sWCH}, s{sSTRIDE}, 6")
        a(f"v_lshlrev_b32 v8, 5, v{vLANE}")
        a(f"v_mov_b32 v7, {OOB}")
        a(f"v_cmp_gt_u32 vcc, 40, v{vLANE}")
        a(f"v_cndmask_b32 v8, v7, v8, vcc")
        a(f"v_lshrrev_b32 v5, 4, v{vLANE}")
        a(f"v_and_b32 v6, 15, v{vLANE}")
        a(f"v_mul_u32_u24 v5, s{sSTRIDE}, v5")
        a(f"v_lshl_add_u32 v15, v6, 4, v5")
        a(f"v_cmp_gt_u32 vcc, 10, v6")
        a(f"v_cndmask_b32 v15, v7, v15, vcc")
        a(f"s_lshl_b32 s{sT2}, s{sRB}, 8")
        a(f"s_lshl_b32 s{sT3}, s{sJIDX}, 3")
        a(f"s_add_u32 s{sT2}, s{sT2}, s{sT3}")
        a(f"s_add_u32 s{sD}, s{sT2}, s{sWAVE}")
        a(f"s_mul_i32 s{sT2}, s{sD}, 1280")
        a(f"s_and_b32 s{sT3}, s{sWAVE}, 3")
        a(f"s_mul_i32 s{sT4}, s{sT3}, 20")
        a(f"s_mul_i32 s{sT5}, s{sRB}, 80")
        a(f"s_add_u32 s{sT4}, s{sT4}, s{sT5}")
        a(f"s_mul_i32 s{sT4}, s{sT4}, s{sSTRIDE}")
        a(f"s_add_u32 s{sKH}, s{sT4}, s{sWOFF}")
        a(f"s_lshl_b32 s{sTT}, s{sSTRIDE}, 2")
        a(f"v_lshrrev_b32 v3, 3, v{vLANE}")
        a(f"v_and_b32 v4, 7, v{vLANE}")
        a(f"v_lshrrev_b32 v5, 4, v{vLANE}")
        a(f"v_mul_u32_u24 v6, 1280, v3")
        a(f"v_xor_b32 v7, v5, v4")
        a(f"v_lshl_add_u32 v{vXS[0]}, v7, 4, v6")
        a(f"v_add_u32 v5, 4, v5")
        a(f"v_xor_b32 v7, v5, v4")
        a(f"v_lshl_add_u32 v{vXS[1]}, v7, 4, v6")
        a(f"s_lshl_b32 s{sT4}, s{sRB}, 8")
        a(f"s_lshl_b32 s{sT5}, s{sWAVE}, 5")
        a(f"s_add_u32 s{sT4}, s{sT4}, s{sT5}")
        a(f"s_mul_i32 s{sXOFF}, s{sT4}, 1280")
        a(f"s_lshl_b32 s{sXBEG}, s{sWAVE}, 12")
        a(f"s_cmp_lt_u32 s{sT3}, 2")
        a(f"s_cselect_b32 s{sW3F}, 1, 0")
        a(f"s_lshl_b32 s{sT4}, s{sT3}, 6")
        for j in range(3):
            a(f"v_add_u32 v5, s{sT4}, v{vLANE}")
            if j: a(f"v_add_u32 v5, {j*256}, v5")
            a("v_mul_u32_u24 v6, 6554, v5")
            a("v_lshrrev_b32 v6, 16, v6")
            a("v_mul_u32_u24 v7, 10, v6")
            a("v_sub_u32 v7, v5, v7")
            a(f"v_mul_u32_u24 v6, s{sSTRIDE}, v6")
            a(f"v_lshl_add_u32 v{vWS[j]}, v7, 4, v6")
        a(f"s_mul_i32 s{sWBEG}, s{sA}, {WA1}")
        a(f"s_lshl_b32 s{sT4}, s{sT3}, 10")
        a(f"s_add_u32 s{sWBEG}, s{sWBEG}, s{sT4}")
        a(f"s_add_u32 s{sWBEG}, s{sWBEG}, {WBASE}")
        a(f"s_mov_b32 s{sOOB}, {OOB}")
        a(f"s_mov_b32 s{sWDST}, s{sWBEG}")
        a(f"s_mov_b32 s{sXDST}, s{sXBEG}")
        a(f"v_and_b32 v5, 31, v{vLANE}")
        a(f"v_lshrrev_b32 v6, 5, v{vLANE}")
        a("v_lshrrev_b32 v7, 1, v5")
        a("v_and_b32 v7, 7, v7")
        a("v_xor_b32 v7, v7, v6")
        a("v_lshlrev_b32 v7, 4, v7")
        a("v_lshl_add_u32 v5, v5, 7, v7")
        a(f"v_add_u32 v5, s{sXBEG}, v5")
        for ks in range(4): a(f"v_xor_b32 v{vXA[ks]}, {ks<<5}, v5")
        a(f"v_lshrrev_b32 v5, 4, v{vLANE}")
        a("v_and_b32 v6, 1, v5")
        a(f"v_mul_u32_u24 v6, {WA1}, v6")
        a("v_lshrrev_b32 v5, 1, v5")
        a("v_lshlrev_b32 v5, 3, v5")
        a(f"v_bfe_u32 v7, v{vLANE}, 2, 2")
        a("v_add_u32 v5, v5, v7")
        a("v_mul_u32_u24 v5, 160, v5")
        a(f"v_and_b32 v7, 3, v{vLANE}")
        a("v_lshl_add_u32 v5, v7, 3, v5")
        a("v_add_u32 v5, v5, v6")
        a(f"v_add_u32 v{vWA}, {WBASE}, v5")
        a(f"v_and_b32 v5, 1, v{vLANE}")
        a("v_lshlrev_b32 v5, 4, v5")
        a("v_mov_b32 v6, 0x3f80")
        a("v_lshlrev_b32 v5, v5, v6")
        a(f"v_bfe_u32 v6, v{vLANE}, 1, 3")
        for d in range(4):
            a(f"v_cmp_eq_u32 vcc, {d}, v6")
            a(f"v_cndmask_b32 v{88+d}, 0, v5, vcc")
        if self.o.get("xw"):
            a(f"v_and_b32 v2, 31, v{vLANE}")
            a(f"v_lshrrev_b32 v3, 5, v{vLANE}")
            a(f"s_and_b32 s{sT3}, s{sRB}, 3")
            a(f"s_lshl_b32 s{sT3}, s{sT3}, 4")
            a("v_lshrrev_b32 v4, 1, v2")
            a(f"v_add_u32 v4, s{sT3}, v4")
            a("v_lshl_add_u32 v4, v3, 6, v4")
            a(f"v_mul_u32_u24 v4, s{sSTRIDE}, v4")
            a("v_and_b32 v5, 1, v2")
            a("v_lshl_add_u32 v4, v5, 7, v4")
            a(f"s_lshr_b32 s{sT3}, s2, 5")
            a(f"s_lshl_b32 s{sT3}, s{sT3}, 5")
            a(f"v_add_u32 v5, s{sT3}, v2")
            a("v_mul_u32_u24 v5, 1280, v5")
            a("v_lshl_add_u32 v5, v3, 7, v5")
            a(f"s_cmp_eq_u32 s{sWAVE}, 0")
            a("s_cselect_b64 vcc, -1, 0")
            a(f"v_cndmask_b32 v{vTCH}, v4, v5, vcc")
            a(f"s_and_b32 s{sTMP}, s{sWOFF}, 0xffffff80")
            a(f"s_lshl_b32 s{sT3}, s{sSTRIDE}, 8")
            a(f"s_add_u32 s{sTMP}, s{sTMP}, s{sT3}")
            a(f"s_lshl_b32 s{sT3}, s{sRB}, 8")
            a(f"s_mul_i32 s{sT3}, s{sT3}, 1280")
            a(f"s_add_u32 s{sT3}, s{sT3}, 512")
            a(f"s_cmp_eq_u32 s{sWAVE}, 0")
            a(f"s_cselect_b32 s{sTMP}, s{sT3}, s{sTMP}")
        a("v_mov_b32 v92, 0x3f803f80")
        a("v_mov_b32 v60, 0"); a("v_mov_b32 v61, 0"); a("v_mov_b32 v62, 0"); a("v_mov_b32 v63, 0")
        self.lane0_off(93)
        a(f"s_mov_b32 s{sMASK}, 0xffff0000")
        a(f"s_mov_b32 s{sWSTp}, {WST}"); a(f"s_mov_b32 s{sWSTm}, {(-2*WST) & 0xffffffff}")
        a(f"s_mov_b32 s{sXSTp}, {XST}"); a(f"s_mov_b32 s{sXSTm}, {(-2*XST) & 0xffffffff}")
        a(f"s_add_u32 s{sWEND}, s{sWBEG}, {3*WST}")
        a(f"s_add_u32 s{sXEND}, s{sXBEG}, {3*XST}")
        a(f"s_mov_b32 s{sRST}, 0")
        a(f"s_mov_b32 s{sC}, 0")
        a(f"s_mov_b32 s{sE}, 0")
        a(f"s_mov_b32 s{sSPEC}, { self.o['specmask'] if self.o.get('specmask') is not None else (0 if self.o.get('x_nospec') else (1<<0)|(1<<1)|(1<<2)|(1<<3)|(1<<4)|(1<<6)|(1<<7)|(1<<8)|(1<<9))}")
        a(f"s_mov_b32 s{sP2OK}, s{sT2}")
        a("s_waitcnt lgkmcnt(0)")
        if self.o.get("ts"): a("s_memrealtime s[26:27]")
        self.build_srd(sX, PX, 2621440)
        a(f"s_cmp_eq_u32 s{sA}, 0")
        a(f"s_cselect_b32 s{sW}, s{PWG}, s{PWU}")
        a(f"s_cselect_b32 s{sW+1}, s{PWG+1}, s{PWU+1}")
        a(f"s_cmp_eq_u32 s{sTYPE}, 2")
        a(f"s_cselect_b32 s{sW}, s{sW}, s{PQKV}")
        a(f"s_cselect_b32 s{sW+1}, s{sW+1}, s{PQKV+1}")
        a(f"s_mov_b32 s{sT3}, 2457600")
        a(f"s_cselect_b32 s{sW+2}, 1966080, s{sT3}")
        a(f"s_mov_b32 s{sW+3}, 0x00020000")
        for j in range(3): self.dma_w(j)
        for q in range(4): self.dma_x(q)
        if self.o.get("ts"): a(f"s_memrealtime s[{sRB2}:{sRB2+1}]")
        a(f"buffer_load_dwordx4 v[156:159], v8, {srd(sX)}, s{sP2OK} offen")
        a(f"buffer_load_dwordx4 v[160:163], v8, {srd(sX)}, s{sP2OK} offen offset:16")
        for c in range(2):
            if c == 1:
                for j in range(3): self.dma_w(j)
                for q in range(4): self.dma_x(q)
            a(f"s_add_u32 s{sWOFF}, s{sWOFF}, s{sWCH}")
            a(f"s_add_u32 s{sXOFF}, s{sXOFF}, 128")
            a(f"s_add_u32 s{sWDST}, s{sWDST}, {WST}")
            a(f"s_add_u32 s{sXDST}, s{sXDST}, {XST}")
        if self.o.get("cpf"):
            a(f"s_cmp_eq_u32 s{sWAVE}, 7")
            a("s_cbranch_scc0 L_nocpf")
            a(f"s_getpc_b64 s[{sTS}:{sTS+1}]")
            a(f"s_and_b32 s{sTS}, s{sTS}, 0xffffff00")
            a(f"v_lshlrev_b32 v2, 7, v{vLANE}")
            for k in range(5):
                a(f"global_load_dword v124, v2, s[{sTS}:{sTS+1}]")
                a("v_add_u32 v2, 8192, v2")
            a.label("L_nocpf")
        self.build_srd(sWS, PWS, WS_SIZE + (DBG_SIZE if self.o.get("dev") else 0))
        self.build_srd(sDBG, PDBG, 256)
        self.ts(0)
        self.ts(10, entry=True)
        self.ts(14, src=26)
        self.ts(15, src=sRB2)
        nts = self.nts([0, 10, 14, 15])
        if self.o.get("xw"):
            a(f"s_mov_b32 s{sTCO}, s{sTMP}")
            a(f"s_lshl_b32 s{sTCS}, s{sSTRIDE}, 7")
            a(f"s_mov_b32 s{sTCH}, s{sW}"); a(f"s_mov_b32 s{sTCH+1}, s{sW+1}"); a(f"s_mov_b32 s{sTCH+2}, s{sW+2}")
            a(f"s_cmp_eq_u32 s{sWAVE}, 0")
            a(f"s_cselect_b32 s{sTCS}, 256, s{sTCS}")
            a(f"s_cselect_b32 s{sTCH}, s{sX}, s{sTCH}"); a(f"s_cselect_b32 s{sTCH+1}, s{sX+1}, s{sTCH+1}"); a(f"s_cselect_b32 s{sTCH+2}, s{sX+2}, s{sTCH+2}")
            a(f"s_mov_b32 s{sTCH+3}, 0x00020000")
            a(f"s_mov_b32 s{sTCB}, 0")
            a(f"s_cselect_b32 s{sTCN}, 3, 0")
            a(f"s_cmp_eq_u32 s{sWAVE}, 1")
            a(f"s_cselect_b32 s{sTCN}, 3, s{sTCN}")
            a(f"s_cmp_eq_u32 s{sWAVE}, 4")
            a(f"s_cselect_b32 s{sTCN}, 3, s{sTCN}")
        else:
            a(f"s_mov_b32 s{sTCH}, s{PWD}"); a(f"s_mov_b32 s{sTCH+1}, s{PWD+1}"); a(f"s_mov_b32 s{sTCH+2}, 1966080"); a(f"s_mov_b32 s{sTCH+3}, 0x00020000")
            a(f"s_mov_b32 s{sTCB}, 0"); a(f"s_mov_b32 s{sTCN}, 0"); a(f"s_mov_b32 s{sTCO}, 0"); a(f"s_mov_b32 s{sTCS}, 0")
            a(f"v_lshlrev_b32 v{vTCH}, 7, v{vLANE}")
        nz = 0
        a(f"s_cmp_eq_u32 s{sTYPE}, 0")
        a("s_cbranch_scc0 L_nozkv")
        a(f"s_cmp_eq_u32 s{sRB}, 0")
        a("s_cbranch_scc0 L_nozkv")
        a(f"s_lshl_b32 s{sT2}, s{sJOB}, 14")
        a(f"s_lshl_b32 s{sT3}, s{sWAVE}, 11")
        a(f"s_add_u32 s{sT2}, s{sT2}, s{sT3}")
        a(f"s_add_u32 s{sT2}, s{sT2}, {KV_OFF}")
        a(f"v_lshlrev_b32 v7, 4, v{vLANE}")
        a(f"buffer_store_dwordx4 v[60:63], v7, {srd(sWS)}, s{sT2} offen sc1")
        a(f"buffer_store_dwordx4 v[60:63], v7, {srd(sWS)}, s{sT2} offen offset:1024 sc1")
        a(f"s_lshl_b32 s{sT2}, s{sJOB}, 8")
        a(f"s_add_u32 s{sT2}, s{sT2}, {CNT_OFF + 16*256}")
        a(f"buffer_store_dword v60, v93, {srd(sWS)}, s{sT2} offen sc1")
        a("s_branch L_zdone")
        a.label("L_nozkv")
        a(f"s_cmp_eq_u32 s{sJIDX}, 3")
        a("s_cbranch_scc0 L_zdone")
        a(f"s_lshl_b32 s{sT2}, s{sRB}, 8")
        a(f"s_add_u32 s{sT2}, s{sT2}, {CNT_OFF}")
        a(f"buffer_store_dword v60, v93, {srd(sWS)}, s{sT2} offen sc1")
        a(f"s_add_u32 s{sT2}, s{sT2}, {8*256}")
        a(f"buffer_store_dword v60, v93, {srd(sWS)}, s{sT2} offen sc1")
        a.label("L_zdone")
        a(f"s_cmp_eq_u32 s{sWAVE}, 0")
        a("s_cbranch_scc0 L_nozl")
        a(f"v_mov_b32 v7, {L_ZERO}")
        a("ds_write_b128 v7, v[60:63]")
        a("v_mov_b32 v4, 0x3f80"); a("v_mov_b32 v5, 0")
        a("ds_write_b64 v7, v[4:5] offset:16")
        a.label("L_nozl")
        for t in range(5):
            a(f"v_mov_b32 v{AP+4*t+2}, 0"); a(f"v_mov_b32 v{AP+4*t+3}, 0")
        a(f"s_mov_b32 s{sA}, s{sP2OK}")
        self.p2_setup()
        if self.o.get("prots"):
            a("s_memrealtime s[98:99]")
        a(f"s_waitcnt vmcnt(7)")
        if self.o.get("prots"):
            a("s_waitcnt lgkmcnt(0)")
            a("s_mov_b32 s27, s98")
            self.ts(13, src=27)
            self.ts(12)
        a("v_mov_b32 v2, 0"); a("v_mov_b32 v4, 0")
        for i in range(8):
            a(f"v_dot2c_f32_bf16 v2, v{156+i}, v92")
            a(f"v_dot2c_f32_bf16 v4, v{156+i}, v{156+i}")
        for r in (8, 4, 2, 1):
            a(f"v_add_f32_dpp v2, v2, v2 row_ror:{r} row_mask:0xf bank_mask:0xf")
            a(f"v_add_f32_dpp v4, v4, v4 row_ror:{r} row_mask:0xf bank_mask:0xf")
        a("v_mov_b32 v3, v2"); a("v_mov_b32 v5, v4")
        a("v_permlane16_swap_b32 v2, v3"); a("v_permlane16_swap_b32 v4, v5")
        a("v_add_f32 v2, v2, v3"); a("v_add_f32 v4, v4, v5")
        a("v_mov_b32 v3, v2"); a("v_mov_b32 v5, v4")
        a("v_permlane32_swap_b32 v2, v3"); a("v_permlane32_swap_b32 v4, v5")
        a("v_add_f32 v2, v2, v3"); a("v_add_f32 v5, v4, v5")
        a(f"v_mul_f32 v4, {f2u(1.0/640):#x}, v2")
        a(f"v_mul_f32 v5, {f2u(1.0/640):#x}, v5")
        a("v_fma_f32 v5, -v4, v4, v5")
        a("v_max_f32 v5, 0, v5")
        a(f"v_add_f32 v5, {f2u(1e-5):#x}, v5")
        a(f"s_lshl_b32 s{sT2}, s{sD}, 3")
        a(f"s_add_u32 s{sT2}, s{sT2}, {ST_OFF}")
        a(f"buffer_store_dwordx2 v[4:5], v93, {srd(sWS)}, s{sT2} offen sc1")
        if self.o.get("prots"): self.ts(6)
        a("s_waitcnt lgkmcnt(0)")
        a("s_barrier")
        self.ts(1)
        if self.o.get("cyc"):
            a("s_memtime s[26:27]")
            self.ts(13, src=26)

    def cs_mfma(self, a):
        for i in range(5):
            c = "0" if i == 0 else "v[84:87]"
            a(f"v_mfma_f32_16x16x32_bf16 v[84:87], v[88:91], v[{64+4*i}:{67+4*i}], {c}")
        a(f"v_and_b32 v6, 15, v{vLANE}")
        a(f"v_lshrrev_b32 v7, 4, v{vLANE}")
        a("v_lshlrev_b32 v5, 5, v6")
        a("v_lshl_add_u32 v5, v7, 4, v5")
        a(f"s_mul_i32 s{sT2}, s{sWAVE}, 320")
        a(f"s_add_u32 s{sT2}, s{sT2}, {L_CSP}")
        a(f"v_add_u32 v5, s{sT2}, v5")
        a(f"v_mov_b32 v3, {L_DUMMY}")
        a("v_cmp_gt_u32 vcc, 10, v6")
        a("s_nop 1")
        a("v_cndmask_b32 v5, v3, v5, vcc")
        a("v_cmp_gt_u32 vcc, 2, v7")
        a("s_nop 1")
        a("v_cndmask_b32 v5, v3, v5, vcc")
        a("s_nop 4")
        a("ds_write_b128 v5, v[84:87]")

    def cs_cross(self, a):
        a(f"v_cmp_le_u32 vcc, 10, v{vLANE}")
        a(f"v_subrev_u32 v7, 10, v{vLANE}")
        a("s_nop 0")
        a(f"v_cndmask_b32 v7, v{vLANE}, v7, vcc")
        a("v_cndmask_b32 v8, 0, 1, vcc")
        a("v_mul_u32_u24 v5, 1280, v8")
        a("v_lshl_add_u32 v5, v7, 5, v5")
        a(f"v_add_u32 v5, {L_CSP}, v5")
        a(f"v_mov_b32 v6, {L_ZERO}")
        a(f"v_cmp_gt_u32 vcc, 20, v{vLANE}")
        a("s_nop 1")
        a("v_cndmask_b32 v5, v6, v5, vcc")
        for k in range(4):
            a(f"ds_read_b128 v[{64+8*k}:{67+8*k}], v5 offset:{k*320}")
            a(f"ds_read_b128 v[{68+8*k}:{71+8*k}], v5 offset:{k*320+16}")
        a("v_lshrrev_b32 v5, 1, v7")
        a("v_lshlrev_b32 v5, 5, v5")
        a("v_lshl_add_u32 v5, v8, 4, v5")
        a("v_and_b32 v6, 1, v7")
        a("v_lshl_add_u32 v5, v6, 3, v5")
        a("v_lshlrev_b32 v5, 2, v5")
        a(f"v_mov_b32 v6, {OOB}")
        a("v_cndmask_b32 v5, v6, v5, vcc")
        a(f"s_lshl_b32 s{sT2}, s{sJIDX}, 3")
        a(f"s_add_u32 s{sT2}, s{sT2}, s{sRB}")
        a(f"s_mul_i32 s{sT2}, s{sT2}, 640")
        a(f"s_add_u32 s{sT2}, s{sT2}, {CSP_OFF}")
        a("s_waitcnt lgkmcnt(0)")
        for e in range(8):
            a(f"v_add_f32 v{64+e}, v{64+e}, v{72+e}")
            a(f"v_add_f32 v{80+e}, v{80+e}, v{88+e}")
            a(f"v_add_f32 v{64+e}, v{64+e}, v{80+e}")
        a(f"buffer_store_dwordx4 v[64:67], v5, {srd(sWS)}, s{sT2} offen sc1")
        a(f"buffer_store_dwordx4 v[68:71], v5, {srd(sWS)}, s{sT2} offen offset:16 sc1")

    def touch_issue(self):
        a = self.a
        a(f"s_sub_u32 s{sT2}, s{sC}, s{sTCB}")
        a(f"s_cmp_lt_u32 s{sT2}, s{sTCN}")
        a(f"s_cselect_b32 s{sT3}, s{sTCO}, s{sOOB}")
        a(f"s_cselect_b32 s{sT4}, s{sTCS}, 0")
        a(f"buffer_load_dword v{vTCD}, v{vTCH}, {srd(sTCH)}, s{sT3} offen")
        a(f"s_add_u32 s{sTCO}, s{sTCO}, s{sT4}")

    def dma_w(self, j):
        a = self.a
        if j < 2:
            a(f"s_add_u32 m0, s{sWDST}, {j*4096}")
            a("s_nop 0")
            a(f"buffer_load_dwordx4 v{vWS[j]}, {srd(sW)}, s{sWOFF} offen lds")
        else:
            a(f"s_add_u32 s{sT4}, s{sWDST}, 8192")
            a(f"s_cmp_lg_u32 s{sW3F}, 0")
            a(f"s_cselect_b32 m0, s{sT4}, {L_DUMMY}")
            a(f"s_cselect_b32 s{sT3}, s{sWOFF}, s{sOOB}")
            a(f"buffer_load_dwordx4 v{vWS[j]}, {srd(sW)}, s{sT3} offen lds")

    def dma_x(self, q):
        a = self.a
        a(f"s_add_u32 m0, s{sXDST}, {q*1024}")
        a(f"s_add_u32 s{sT5}, s{sXOFF}, {q*8*1280}")
        a(f"buffer_load_dwordx4 v{vXS[q&1]}, {srd(sX)}, s{sT5} offen lds")

    def wphi_gather(self, which, a=None):
        a = a or self.a
        a(f"s_lshr_b32 s{sT2}, s{sWAVE}, 1")
        a(f"s_and_b32 s{sT3}, s{sWAVE}, 1")
        a(f"s_lshl_b32 s{sT4}, s{sJOB}, 2")
        a(f"s_lshl_b32 s{sT5}, s{sJOB}, 3")
        a(f"s_cmp_eq_u32 s{sTYPE}, 0")
        a(f"s_cselect_b32 s{sT4}, s{sT4}, s{sT5}")
        a(f"s_add_u32 s{sT4}, s{sT4}, s{sT2}")
        if which: a(f"s_add_u32 s{sT4}, s{sT4}, 4")
        a(f"s_mul_i32 s{sT4}, s{sT4}, 800")
        a(f"s_and_b32 s{sT5}, s{sT2}, 1")
        a(f"s_lshl_b32 s{sT3}, s{sT3}, 2")
        a(f"s_sub_u32 s{sT3}, s{sT3}, s{sT5}")
        a(f"v_bfe_u32 v2, v{vLANE}, 3, 2")
        a(f"v_and_b32 v3, 3, v{vLANE}")
        a("v_lshl_add_u32 v2, v2, 2, v3")
        a(f"v_bfe_u32 v3, v{vLANE}, 2, 1")
        a("v_mul_u32_u24 v3, 10, v3")
        a("v_add_u32 v3, v3, v2")
        a(f"v_lshrrev_b32 v4, 5, v{vLANE}")
        a(f"v_add_u32 v4, s{sT3}, v4")
        for jh in range(2):
            if jh: a("v_add_u32 v4, 2, v4")
            a("v_mul_u32_u24 v5, 160, v4")
            a("v_lshl_add_u32 v5, v3, 1, v5")
            a("v_cmp_gt_u32 vcc, 5, v4")
            a(f"v_mov_b32 v6, {OOB}")
            a("v_cndmask_b32 v5, v6, v5, vcc")
            a("v_cmp_gt_u32 vcc, 10, v2")
            a("v_cndmask_b32 v5, v6, v5, vcc")
            for e in range(4):
                d = WRAW + 8 * which + 4 * jh + e
                a(f"buffer_load_ushort v{d}, v5, {srd(sT0)}, s{sT4} offen offset:{e*40}")

    def p2_setup(self):
        a = self.a
        a(f"s_lshr_b32 s{sT2}, s2, 3")
        a(f"s_sub_u32 s{sT3}, s{sT2}, 4")
        a(f"s_cmp_lt_u32 s{sT2}, 8")
        a(f"s_cselect_b32 s{sT3}, s{sT2}, s{sT3}")
        a(f"s_and_b32 s{sT5}, s{sXCD}, 1")
        a(f"s_sub_u32 s{sT4}, 28, s{sT5}")
        a(f"s_cmp_lt_u32 s{sT3}, s{sT4}")
        a(f"s_cselect_b32 s{sP2OK}, 1, 0")
        a(f"s_cmp_eq_u32 s{sTYPE}, 1")
        a(f"s_cselect_b32 s{sP2OK}, 0, s{sP2OK}")
        a(f"s_lshr_b32 s{sT4}, s{sXCD}, 1")
        a(f"s_mul_i32 s{sT4}, s{sT4}, 55")
        a(f"s_mul_i32 s{sT5}, s{sT5}, 28")
        a(f"s_add_u32 s{sT4}, s{sT4}, s{sT5}")
        a(f"s_add_u32 s{sT4}, s{sT4}, s{sT3}")
        a(f"s_mul_i32 s{sRB2}, s{sT4}, 6554")
        a(f"s_lshr_b32 s{sRB2}, s{sRB2}, 16")
        a(f"s_mul_i32 s{sT2}, s{sRB2}, 10")
        a(f"s_sub_u32 s{sCB}, s{sT4}, s{sT2}")
        a(f"v_lshrrev_b32 v2, 3, v{vLANE}")
        a(f"v_and_b32 v3, 7, v{vLANE}")
        a("v_bfe_u32 v4, v2, 1, 1")
        a("v_lshlrev_b32 v4, 2, v4")
        a("v_xor_b32 v3, v3, v4")
        a("v_lshlrev_b32 v3, 4, v3")
        a("v_lshrrev_b32 v4, 2, v2")
        a("v_lshlrev_b32 v4, 3, v4")
        a("v_and_b32 v5, 3, v2")
        a("v_add_u32 v4, v4, v5")
        a("v_mul_u32_u24 v4, 1280, v4")
        a(f"v_add_u32 v{vP2}, v4, v3")
        a(f"v_add_u32 v{vP2+1}, {4*1280}, v{vP2}")
        a("v_mul_u32_u24 v4, 2560, v2")
        a(f"v_add_u32 v{vP2+2}, v4, v3")
        a(f"v_add_u32 v{vP2+3}, 1280, v{vP2+2}")
        a(f"s_and_b32 s{sT2}, s{sWAVE}, 1")
        a(f"s_cmp_eq_u32 s{sT2}, 0")
        a("s_cselect_b64 vcc, -1, 0")
        a(f"v_cndmask_b32 v99, v{vP2+1}, v{vP2}, vcc")

    def p2_pref_begin(self):
        a = self.a
        self.build_srd(sT0, PWD, 1966080)
        self.build_srd(sT1, PWO, 819200)
        a(f"s_lshr_b32 s{sA}, s{sWAVE}, 1")
        a(f"s_mul_i32 s{sA}, s{sA}, {16*1280}")
        a(f"s_lshl_b32 s{sE}, s{sCB}, 7")
        a(f"s_add_u32 s{sA}, s{sA}, s{sE}")
        a(f"s_lshl_b32 s{sE}, s{sWAVE}, 10")
    def p2_pref(self, i):
        a = self.a
        st, kh = i >> 1, i & 1
        row0 = (48 * kh + 4 * st) * 16
        a(f"s_add_u32 m0, s{sE}, {st * 16384 + kh * 8192}")
        a(f"s_add_u32 s{sTMP}, s{sA}, {row0 * 1280}")
        a(f"buffer_load_dwordx4 v99, {srd(sT0)}, s{sTMP} offen lds")

    def rd_x(self, ks):
        r = XF[ks & 1]
        self.a(f"ds_read_b128 v[{r}:{r+3}], v{vXA[ks]}")
    def rd_w(self, ks, t):
        r = WF + 4 * t
        self.a(f"ds_read_b64_tr_b16 v[{r}:{r+1}], v{vWA} offset:{ks*2560 + t*32}")
        self.a(f"ds_read_b64_tr_b16 v[{r+2}:{r+3}], v{vWA} offset:{ks*2560 + 640 + t*32}")

    def mainloop(self):
        a = self.a
        self.rd_x(0)
        for t in range(5): self.rd_w(0, t)
        for j in range(3): self.dma_w(j)
        for q in range(4): self.dma_x(q)
        a(f"s_add_u32 s{sWOFF}, s{sWOFF}, s{sWCH}")
        a(f"s_add_u32 s{sXOFF}, s{sXOFF}, 128")
        a(f"s_mov_b32 s{sWDST}, s{sWBEG}")
        a(f"s_mov_b32 s{sXDST}, s{sXBEG}")
        for t in range(5):
            a(f"s_waitcnt lgkmcnt({8 if t == 0 else 9})")
            a(f"v_mfma_f32_32x32x16_bf16 v[{ACC+16*t}:{ACC+16*t+15}], v[{WF+4*t}:{WF+4*t+3}], v[{XF[0]}:{XF[0]+3}], 0")
            if t == 0: self.rd_x(1)
            self.rd_w(1, t)
        stag = not self.o.get("nostag")
        if stag:
            a(f"s_cmp_ge_u32 s{sWAVE}, 4")
            a("s_cbranch_scc1 L_loop_ks1B")
        a("s_branch L_loop_ks1A")
        schedA = {(3, 0): ("w", 0), (3, 1): ("x", 0), (3, 2): ("w", 1), (3, 4): ("x", 1), (0, 0): ("w", 2), (0, 2): ("x", 2), (0, 4): ("x", 3)}
        schedB = {(1, 0): ("w", 0), (1, 1): ("x", 0), (1, 2): ("w", 1), (1, 4): ("x", 1), (2, 0): ("w", 2), (2, 1): ("x", 2), (2, 2): ("x", 3)}
        for cls, sched in (("A", schedA), ("B", schedB)):
            if cls == "B" and not stag: break
            order = sorted(sched.keys(), key=lambda k: ((k[0] + 1) & 3, k[1]))
            lastw = [k for k in order if sched[k][0] == "w"][-1]
            lastx = [k for k in order if sched[k][0] == "x"][-1]
            a.label(f"L_loop{cls}")
            for ks in range(4):
                xf = XF[ks & 1]
                nks = (ks + 1) & 3
                if ks == 1: a.label(f"L_loop_ks1{cls}")
                if ks == 3:
                    a(f"s_bitcmp1_b32 s{sSPEC}, s{sC}")
                    a("s_cbranch_scc1 L_pre_special")
                    a("s_waitcnt vmcnt(9) lgkmcnt(%d)" % (8 if self.o.get("x_lg8") else 0))
                    a.label(f"L_pre_back{cls}")
                    if self.o.get("loopts"):
                        a("s_memrealtime s[98:99]")
                    a("s_barrier")
                    if self.o.get("loopts"):
                        a("s_waitcnt lgkmcnt(0)")
                        a("v_mov_b32 v9, s98")
                        a(f"v_cmp_eq_u32 vcc, s{sC}, v{vLANE}")
                        a("v_cndmask_b32 v125, v125, v9, vcc")
                        a("s_memrealtime s[98:99]")
                        a("s_waitcnt lgkmcnt(0)")
                        a(f"s_add_u32 s26, s{sC}, 16")
                        a("v_mov_b32 v9, s98")
                        a(f"v_cmp_eq_u32 vcc, s26, v{vLANE}")
                        a("v_cndmask_b32 v125, v125, v9, vcc")
                    a(f"v_add_u32 v{vWA}, s{sDW}, v{vWA}")
                    a(f"v_add_u32 v{vXA[0]}, s{sDX}, v{vXA[0]}")
                    a(f"s_cmp_lt_u32 s{sC}, 7")
                    a(f"s_cselect_b32 s{sE}, {0 if self.o.get('x_nodma') else 1}, 0")
                    a(f"s_bitcmp1_b32 s{sSPEC}, s{sC}")
                    a("s_cbranch_scc1 L_post_special")
                    a.label(f"L_post_back{cls}")
                for t in range(5):
                    a(f"s_waitcnt lgkmcnt({8 if t == 0 else 9})")
                    a(f"v_mfma_f32_32x32x16_bf16 v[{ACC+16*t}:{ACC+16*t+15}], v[{WF+4*t}:{WF+4*t+3}], v[{xf}:{xf+3}], v[{ACC+16*t}:{ACC+16*t+15}]")
                    if t == 0: self.rd_x(nks)
                    self.rd_w(nks, t)
                    if (ks, t) in sched:
                        kind, q = sched[(ks, t)]
                        lab = f"L_sk{kind}{q}{cls}"
                        a(f"s_cmp_eq_u32 s{sE}, 0")
                        a(f"s_cbranch_scc1 {lab}")
                        if kind == "w": self.dma_w(q)
                        else: self.dma_x(q)
                        if (ks, t) == lastw:
                            a(f"s_add_u32 s{sWOFF}, s{sWOFF}, s{sWCH}")
                            a(f"s_add_u32 s{sWDST}, s{sWDST}, {WST}")
                            a(f"s_cmp_ge_u32 s{sWDST}, s{sWEND}")
                            a(f"s_cselect_b32 s{sWDST}, s{sWBEG}, s{sWDST}")
                        if (ks, t) == lastx:
                            a(f"s_add_u32 s{sXOFF}, s{sXOFF}, 128")
                            a(f"s_add_u32 s{sXDST}, s{sXDST}, {XST}")
                            a(f"s_cmp_ge_u32 s{sXDST}, s{sXEND}")
                            a(f"s_cselect_b32 s{sXDST}, s{sXBEG}, s{sXDST}")
                        a.label(lab)
                    if ks == 3 and t in (0, 1, 2):
                        a(f"v_add_u32 v{vXA[t+1]}, s{sDX}, v{vXA[t+1]}")
                    if ks == 2 and t == 3 and not self.o.get("x_notch"): self.touch_issue()
                    if ks == 1 and t == 3:
                        a(f"s_add_u32 s{sRST}, s{sRST}, 1")
                        a(f"s_cmp_eq_u32 s{sRST}, 3")
                        a(f"s_cselect_b32 s{sDW}, s{sWSTm}, s{sWSTp}")
                        a(f"s_cselect_b32 s{sDX}, s{sXSTm}, s{sXSTp}")
                        a(f"s_cselect_b32 s{sRST}, 0, s{sRST}")
            a(f"s_add_u32 s{sC}, s{sC}, 1")
            a(f"s_cmp_lt_u32 s{sC}, 10")
            a(f"s_cbranch_scc1 L_loop{cls}")
            if cls == "A" and stag: a("s_branch L_loop_done")
        a.label("L_loop_done")
        o = self.ool
        for nm in ("L_pre_back", "L_post_back"):
            o.label(nm)
            if stag:
                o(f"s_cmp_ge_u32 s{sWAVE}, 4")
                o(f"s_cbranch_scc1 {nm}B")
            o(f"s_branch {nm}A")
        o = self.ool
        o.label("L_pre_special")
        o(f"s_cmp_ge_u32 s{sC}, 8")
        o("s_cbranch_scc1 L_pre89")
        o(f"s_cmp_eq_u32 s{sC}, 0")
        o("s_cbranch_scc1 L_pre0")
        o(f"s_cmp_eq_u32 s{sC}, 1")
        o("s_cbranch_scc1 L_pre1")
        o("s_waitcnt vmcnt(8) lgkmcnt(0)")
        o(f"s_cmp_eq_u32 s{sC}, 7")
        o("s_cbranch_scc0 L_pre_back")
        o(f"s_cmp_eq_u32 s{sWAVE}, 0")
        o("s_cbranch_scc0 L_pre_back")
        o(f"s_mov_b32 s{sT2}, 0")
        o.label("L_spin_st")
        o(f"v_and_b32 v2, v{vPOLL}, v{vPOLL+1}")
        for i in range(2, 8): o(f"v_and_b32 v2, v2, v{vPOLL+i}")
        o("v_and_b32 v2, 32, v2")
        o("s_nop 1")
        o(f"v_readfirstlane_b32 s{sT3}, v2")
        o("s_nop 3")
        o(f"s_cmp_eq_u32 s{sT3}, 32")
        o("s_cbranch_scc1 L_pre_back")
        o(f"s_add_u32 s{sT2}, s{sT2}, 1")
        o(f"s_cmp_gt_u32 s{sT2}, 200000")
        o("s_cbranch_scc1 L_pre_back")
        o("s_sleep 2")
        self.poll_loads(o)
        o("s_waitcnt vmcnt(0)")
        o("s_branch L_spin_st")
        o.label("L_pre0")
        o("s_waitcnt vmcnt(8) lgkmcnt(0)")
        o("s_branch L_pre_back")
        o.label("L_pre1")
        o(f"s_cmp_eq_u32 s{sTYPE}, 2")
        o("s_cbranch_scc1 L_pre1f")
        o(f"s_cmp_eq_u32 s{sTYPE}, 0")
        o("s_cbranch_scc1 L_pre1k")
        o("s_waitcnt vmcnt(30) lgkmcnt(0)")
        o("s_branch L_pre_back")
        o.label("L_pre1k")
        o("s_waitcnt vmcnt(22) lgkmcnt(0)")
        o("s_branch L_pre_back")
        o.label("L_pre1f")
        o("s_waitcnt vmcnt(14) lgkmcnt(0)")
        o("s_branch L_pre_back")
        o.label("L_pre89")
        o("s_waitcnt vmcnt(0) lgkmcnt(0)")
        o("s_branch L_pre_back")
        o.label("L_post_special")
        o(f"s_cmp_eq_u32 s{sC}, 9")
        o("s_cbranch_scc1 L_post9")
        o(f"s_cmp_eq_u32 s{sC}, 8")
        o("s_cbranch_scc1 L_post8")
        o(f"s_cmp_eq_u32 s{sC}, 7")
        o("s_cbranch_scc1 L_post7")
        o(f"s_cmp_eq_u32 s{sC}, 0")
        o("s_cbranch_scc1 L_postA")
        o(f"s_cmp_eq_u32 s{sC}, 2")
        o("s_cbranch_scc1 L_postM")
        o(f"s_cmp_eq_u32 s{sC}, 3")
        o("s_cbranch_scc1 L_postW")
        o(f"s_cmp_eq_u32 s{sWAVE}, 0")
        o("s_cbranch_scc0 L_post_back")
        o(f"s_cmp_eq_u32 s{sC}, 6")
        o("s_cbranch_scc1 L_post6")
        o(f"s_cmp_eq_u32 s{sC}, 4")
        o("s_cbranch_scc0 L_post_back")
        o(f"v_mov_b32 v2, 1")
        self.lane0_off(3, o)
        o(f"s_lshr_b32 s{sT2}, s{sRB}, 1")
        o(f"s_lshl_b32 s{sT2}, s{sT2}, 6")
        o(f"s_and_b32 s{sT3}, s{sRB}, 1")
        o(f"s_lshl_b32 s{sT3}, s{sT3}, 2")
        o(f"s_add_u32 s{sT2}, s{sT2}, s{sT3}")
        o(f"buffer_atomic_add v2, v3, {srd(sDBG)}, s{sT2} offen")
        o("s_branch L_post_back")
        o.label("L_post6")
        self.poll_loads(o)
        o("s_branch L_post_back")
        o.label("L_postM")
        self.cs_mfma(o)
        o("s_branch L_post_back")
        o.label("L_postA")
        for i in range(5):
            o(f"buffer_load_dwordx4 v[{64+4*i}:{67+4*i}], v15, {srd(sW)}, s{sOOB if self.o.get('nocs') else sKH} offen")
            if i < 4: o(f"s_add_u32 s{sKH}, s{sKH}, s{sTT}")
        o(f"s_cmp_eq_u32 s{sTYPE}, 2")
        o("s_cbranch_scc1 L_post_back")
        self.build_srd(sT0, PPHI, 25600, o)
        self.wphi_gather(0, o)
        o(f"s_cmp_eq_u32 s{sTYPE}, 0")
        o("s_cbranch_scc1 L_post_back")
        self.wphi_gather(1, o)
        o("s_branch L_post_back")
        o.label("L_postW")
        o(f"s_cmp_eq_u32 s{sWAVE}, 0")
        o("s_cbranch_scc0 L_postW2")
        self.cs_cross(o)
        o.label("L_postW2")
        if not self.o.get("nowarm"):
            o(f"v_lshlrev_b32 v{vTCH}, 7, v{vLANE}")
            o(f"s_mov_b32 s{sTCH}, s{PWD}"); o(f"s_mov_b32 s{sTCH+1}, s{PWD+1}"); o(f"s_mov_b32 s{sTCH+2}, 1966080")
            o(f"s_lshr_b32 s{sT3}, s2, 3")
            o(f"s_mul_i32 s{sT2}, s{sT3}, {480*128}")
            o(f"s_mul_i32 s{sT4}, s{sT3}, {200*128}")
            o(f"s_mov_b32 s{sTCB}, 4")
            o(f"s_mov_b32 s{sTCS}, 8192")
            o(f"s_cmp_eq_u32 s{sWAVE}, 2")
            o(f"s_cselect_b32 s{sTCN}, 4, 0")
            o(f"s_cselect_b32 s{sTCO}, s{sT2}, 0")
            o(f"s_add_u32 s{sT2}, s{sT2}, {240*128}")
            o(f"s_cmp_eq_u32 s{sWAVE}, 3")
            o(f"s_cselect_b32 s{sTCN}, 4, s{sTCN}")
            o(f"s_cselect_b32 s{sTCO}, s{sT2}, s{sTCO}")
            o(f"s_cmp_eq_u32 s{sWAVE}, 6")
            o(f"s_cselect_b32 s{sTCN}, 4, s{sTCN}")
            o(f"s_cselect_b32 s{sTCO}, s{sT4}, s{sTCO}")
            o(f"s_cselect_b32 s{sTCH}, s{PWO}, s{sTCH}")
            o(f"s_cselect_b32 s{sTCH+1}, s{PWO+1}, s{sTCH+1}")
            o(f"s_cselect_b32 s{sTCH+2}, 819200, s{sTCH+2}")
        o("s_branch L_post_back")
        o.label("L_post7")
        o(f"v_and_b32 v2, 31, v{vLANE}")
        o("v_lshlrev_b32 v3, 3, v2")
        o(f"s_lshl_b32 s{sT2}, s{sRB}, 8")
        o(f"s_lshl_b32 s{sT3}, s{sWAVE}, 5")
        o(f"s_add_u32 s{sT2}, s{sT2}, s{sT3}")
        o(f"s_lshl_b32 s{sT2}, s{sT2}, 3")
        o(f"s_add_u32 s{sT2}, s{sT2}, {ST_OFF}")
        o(f"buffer_load_dwordx2 v[{vSTAT}:{vSTAT+1}], v3, {srd(sWS)}, s{sT2} offen sc1")
        o(f"s_cmp_ge_u32 s{sWAVE}, 5")
        o("s_cbranch_scc1 L_post_back")
        o("v_lshlrev_b32 v3, 2, v2")
        o(f"s_mul_i32 s{sT2}, s{sJIDX}, {8*640}")
        o(f"s_lshl_b32 s{sT3}, s{sWAVE}, 7")
        o(f"s_add_u32 s{sT2}, s{sT2}, s{sT3}")
        o(f"s_add_u32 s{sT2}, s{sT2}, {CSP_OFF}")
        for r in range(8):
            if r * 640 < 4096: o(f"buffer_load_dword v{CSL+r}, v3, {srd(sWS)}, s{sT2} offen offset:{r*640} sc1")
            else:
                o(f"s_add_u32 s{sT3}, s{sT2}, {r*640}")
                o(f"buffer_load_dword v{CSL+r}, v3, {srd(sWS)}, s{sT3} offen sc1")
        o("s_branch L_post_back")
        o.label("L_post8")
        o(f"v_rsq_f32 v{vRSTD}, v{vSTAT+1}")
        o(f"v_sub_f32 v2, 0, v{vSTAT}")
        o(f"v_cvt_pk_bf16_f32 v{BP}, v2, v2")
        o(f"v_and_b32 v3, s{sMASK}, v{BP}")
        o("v_sub_f32 v3, v2, v3")
        o(f"v_cvt_pk_bf16_f32 v{BP+1}, v3, 0")
        o(f"v_mov_b32 v{BP+2}, 0"); o(f"v_mov_b32 v{BP+3}, 0")
        o(f"s_cmp_eq_u32 s{sTYPE}, 2")
        o("s_cbranch_scc1 L_post8b")
        for i in range(8): o(f"v_lshl_or_b32 v{WPHI+i}, v{WRAW+2*i+1}, 16, v{WRAW+2*i}")
        o(f"v_lshlrev_b32 v6, 4, v{vLANE}")
        o(f"s_lshl_b32 s{sT2}, s{sWAVE}, 10")
        o(f"s_add_u32 s{sT2}, s{sT2}, {L_WPHI}")
        o(f"v_add_u32 v6, s{sT2}, v6")
        o(f"ds_write_b128 v6, v[{WPHI}:{WPHI+3}]")
        o(f"ds_write_b128 v6, v[{WPHI+4}:{WPHI+7}] offset:8192")
        o.label("L_post8b")
        o(f"s_cmp_ge_u32 s{sWAVE}, 5")
        o("s_cbranch_scc1 L_post_back")
        for r in (0, 2, 4, 6): o(f"v_add_f32 v{CSL+r}, v{CSL+r}, v{CSL+r+1}")
        o(f"v_add_f32 v{CSL}, v{CSL}, v{CSL+2}"); o(f"v_add_f32 v{CSL+4}, v{CSL+4}, v{CSL+6}")
        o(f"v_add_f32 v{CSL}, v{CSL}, v{CSL+4}")
        o(f"v_cvt_pk_bf16_f32 v5, v{CSL}, 0")
        o("v_lshlrev_b32 v2, 16, v5")
        o(f"v_sub_f32 v2, v{CSL}, v2")
        o(f"v_cvt_pk_bf16_f32 v4, v{CSL}, v2")
        o(f"v_lshlrev_b32 v6, 3, v{vLANE}")
        o(f"s_lshl_b32 s{sT2}, s{sWAVE}, 8")
        o(f"s_add_u32 s{sT2}, s{sT2}, {L_CSP}")
        o(f"v_add_u32 v6, s{sT2}, v6")
        o(f"v_mov_b32 v7, {L_DUMMY}")
        o(f"v_cmp_gt_u32 vcc, 32, v{vLANE}")
        o("s_nop 1")
        o("v_cndmask_b32 v6, v7, v6, vcc")
        o("ds_write_b64 v6, v[4:5]")
        o("s_branch L_post_back")
        o.label("L_post9")
        o(f"v_lshlrev_b32 v6, 3, v{vLANE}")
        o(f"v_add_u32 v6, {L_CSP}, v6")
        o(f"v_cmp_gt_u32 vcc, 32, v{vLANE}")
        o(f"v_mov_b32 v7, {L_ZERO}")
        o("s_nop 1")
        o("v_cndmask_b32 v8, v7, v6, vcc")
        o("v_mov_b32 v9, 256")
        o("v_cndmask_b32 v9, 0, v9, vcc")
        for t in range(5):
            o(f"ds_read_b64 v[{AP+4*t}:{AP+4*t+1}], v8")
            if t < 4: o("v_add_u32 v8, v8, v9")
        o("s_branch L_post_back")

    def poll_loads(self, o):
        o("v_mov_b32 v2, 0")
        for k in range(4):
            o(f"buffer_load_dwordx2 v[{vPOLL+2*k}:{vPOLL+2*k+1}], v2, {srd(sDBG)}, 0 offen offset:{k*64} sc1")

    def mean_corr(self):
        a = self.a
        a("s_waitcnt lgkmcnt(0)")
        for t in range(5):
            b = AP + 4 * t
            a(f"v_mfma_f32_32x32x16_bf16 v[{ACC+16*t}:{ACC+16*t+15}], v[{b}:{b+3}], v[{BP}:{BP+3}], v[{ACC+16*t}:{ACC+16*t+15}]")

    def arrive(self):
        a = self.a
        lab = a.uniq("L_arr")
        a(f"s_cmp_eq_u32 s{sWAVE}, 0")
        a(f"s_cbranch_scc0 {lab}")
        a("v_mov_b32 v2, 1")
        self.lane0_off(3)
        a(f"buffer_atomic_add v2, v3, {srd(sWS)}, s{sT2} offen")
        a.label(lab)

    def poll2(self, offA, offB, target):
        a = self.a
        lab = a.uniq("L_poll"); done = a.uniq("L_polld")
        a(f"s_mov_b32 s{sT4}, 0")
        a("v_mov_b32 v3, 0")
        a.label(lab)
        a(f"buffer_load_dword v2, v3, {srd(sWS)}, s{offA} offen sc1")
        a(f"buffer_load_dword v4, v3, {srd(sWS)}, s{offB} offen sc1")
        a("s_waitcnt vmcnt(0)")
        a("v_min_u32 v2, v2, v4")
        a("s_nop 0")
        a(f"v_readfirstlane_b32 s{sT5}, v2")
        a("s_nop 3")
        a(f"s_cmp_ge_u32 s{sT5}, {target}")
        a(f"s_cbranch_scc1 {done}")
        a(f"s_add_u32 s{sT4}, s{sT4}, 1")
        a(f"s_cmp_gt_u32 s{sT4}, 300000")
        a(f"s_cbranch_scc1 {done}")
        a("s_sleep 1")
        a(f"s_branch {lab}")
        a.label(done)

    def epi_ffn(self):
        a = self.a
        a("s_barrier")
        self.ts(11)
        pf = self.a.uniq("L_pf")
        a(f"v_mul_f32 v25, {f2u(-LOG2E):#x}, v{vRSTD}")
        a(f"v_lshlrev_b32 v26, 4, v{vLANE}")
        self.p2_pref_begin()
        a(f"s_lshl_b32 s{sT2}, s{sRB}, 3")
        a(f"s_add_u32 s{sT2}, s{sT2}, s{sWAVE}")
        a(f"s_mul_i32 s{sT2}, s{sT2}, 136")
        a(f"s_add_u32 s{sT2}, s{sT2}, s{sT0F}")
        a(f"s_lshl_b32 s{sT2}, s{sT2}, 10")
        a(f"s_cmp_eq_u32 s{sP2OK}, 0")
        a(f"s_cselect_b32 s{sA}, s{sOOB}, s{sA}")
        npf = 0
        for t in range(5):
            A0 = ACC + 16 * t
            T = 64 + 12 * (t & 1)
            blocks = [
                [f"v_mul_f32 v{T+r}, v{A0+r}, v25" for r in range(8)],
                [f"v_exp_f32 v{T+r}, v{T+r}" for r in range(8)],
                [f"v_mul_f32 v{A0+r}, v{A0+r}, v{A0+8+r}" for r in range(8)],
                [f"v_fma_f32 v{T+r}, v{T+r}, v23, v23" for r in range(8)],
                [f"v_rcp_f32 v{T+r}, v{T+r}" for r in range(8)],
                [f"v_mul_f32 v{A0+r}, v{A0+r}, v{T+r}" for r in range(8)],
                [f"v_cvt_pk_bf16_f32 v{T+8+d}, v{A0+2*d}, v{A0+2*d+1}" for d in range(4)],
            ]
            for bi, blk in enumerate(blocks):
                for op in blk: a(op)
                if bi in (0, 1, 3, 4) and npf < 20:
                    self.p2_pref(npf); npf += 1
            if t == 4:
                a(f"s_cmp_ge_u32 s{sJOB}, 16")
                a("s_cbranch_scc1 L_ffn_nost")
                a(f"s_add_u32 s{sT2}, s{sT2}, 4096")
                a(f"buffer_store_dwordx4 v[{T+8}:{T+11}], v26, {srd(sWS)}, s{sT2} offen sc1")
            else:
                a(f"buffer_store_dwordx4 v[{T+8}:{T+11}], v26, {srd(sWS)}, s{sT2} offen offset:{t*1024} sc1")
        a.label("L_ffn_nost")
        self.ts(12 if not self.o.get("prots") else 99)
        a("s_waitcnt vmcnt(0)")
        a("s_barrier")
        a(f"s_lshl_b32 s{sT2}, s{sRB}, 8")
        a(f"s_add_u32 s{sT2}, s{sT2}, {CNT_OFF}")
        self.arrive()
        self.ts(3)

    def softmax10(self, D, E, PK, c1, T):
        a = self.a
        mx, mn, t0, t1, sp, sn = T, T+1, T+2, T+3, T+4, T+5
        a(f"v_max3_f32 v{mx}, v{D}, v{D+1}, v{D+2}")
        a(f"v_min3_f32 v{mn}, v{D}, v{D+1}, v{D+2}")
        for i in (3, 5, 7):
            a(f"v_max3_f32 v{mx}, v{mx}, v{D+i}, v{D+i+1}")
            a(f"v_min3_f32 v{mn}, v{mn}, v{D+i}, v{D+i+1}")
        a(f"v_max_f32 v{mx}, v{mx}, v{D+9}")
        a(f"v_min_f32 v{mn}, v{mn}, v{D+9}")
        a(f"v_mov_b32 v{t0}, v{mx}")
        a(f"v_mov_b32 v{t1}, v{mn}")
        a(f"v_permlane32_swap_b32 v{mx}, v{t0}")
        a(f"v_permlane32_swap_b32 v{mn}, v{t1}")
        a(f"v_max_f32 v{mx}, v{mx}, v{t0}")
        a(f"v_min_f32 v{mn}, v{mn}, v{t1}")
        a(f"v_mul_f32 v{mx}, v{mx}, v{c1}")
        a(f"v_mul_f32 v{mn}, v{mn}, v{c1}")
        for i in range(10):
            a(f"v_fma_f32 v{E+i}, v{D+i}, v{c1}, -v{mx}")
            a(f"v_fma_f32 v{E+10+i}, -v{D+i}, v{c1}, v{mn}")
        for i in range(20): a(f"v_exp_f32 v{E+i}, v{E+i}")
        a(f"v_add_f32 v{sp}, v{E}, v{E+1}")
        a(f"v_add_f32 v{sn}, v{E+10}, v{E+11}")
        for i in range(2, 10):
            a(f"v_add_f32 v{sp}, v{sp}, v{E+i}")
            a(f"v_add_f32 v{sn}, v{sn}, v{E+10+i}")
        a(f"v_mov_b32 v{t0}, v{sp}")
        a(f"v_mov_b32 v{t1}, v{sn}")
        a(f"v_permlane32_swap_b32 v{sp}, v{t0}")
        a(f"v_permlane32_swap_b32 v{sn}, v{t1}")
        a(f"v_add_f32 v{sp}, v{sp}, v{t0}")
        a(f"v_add_f32 v{sn}, v{sn}, v{t1}")
        a(f"v_rcp_f32 v{sp}, v{sp}")
        a(f"v_rcp_f32 v{sn}, v{sn}")
        for i in range(10):
            a(f"v_mul_f32 v{E+i}, v{E+i}, v{sp}")
            a(f"v_mul_f32 v{E+10+i}, v{E+10+i}, v{sn}")
        for i in range(10):
            a(f"v_cvt_pk_bf16_f32 v{PK+i}, v{E+2*i}, v{E+2*i+1}")

    def cvtP(self, P, half):
        a = self.a
        for t in range(5):
            for i in range(2):
                G_ = 2 * t + i
                r = ACC + 16 * t + 8 * half + 4 * i
                a(f"v_cvt_pk_bf16_f32 v{P+2*G_}, v{r}, v{r+1}")
                a(f"v_cvt_pk_bf16_f32 v{P+2*G_+1}, v{r+2}, v{r+3}")
        a(f"v_mov_b32 v{P+20}, 0"); a(f"v_mov_b32 v{P+21}, 0")

    def rd_af(self, idx0, AF):
        for s_ in range(2):
            self.a(f"ds_read_b128 v[{AF+4*s_}:{AF+4*s_+3}], v30 offset:{(idx0+s_)*1024}")
    def feat_mfma(self, D, P, p, AF):
        a = self.a
        G0 = [0, 2, 5, 7][p]
        a(f"v_mfma_f32_32x32x16_bf16 v[{D}:{D+15}], v[{AF}:{AF+3}], v[{P+2*G0}:{P+2*G0+3}], 0")
        a(f"v_mfma_f32_32x32x16_bf16 v[{D}:{D+15}], v[{AF+4}:{AF+7}], v[{P+2*G0+4}:{P+2*G0+7}], v[{D}:{D+15}]")

    def epi_kv(self):
        a = self.a
        P = 64
        D = [104, 120]
        E = 136
        PK = 88
        T = 156
        AFa = [40, 48, 8, 16]
        a(f"v_mul_f32 v25, {f2u(LOG2E):#x}, v{vRSTD}")
        a(f"v_lshlrev_b32 v30, 4, v{vLANE}")
        a(f"v_add_u32 v30, {L_WPHI}, v30")
        self.rd_af(0, 40); self.rd_af(2, 48)
        a(f"v_and_b32 v5, 31, v{vLANE}")
        a(f"s_lshl_b32 s{sT2}, s{sWAVE}, 5")
        a(f"v_add_u32 v5, s{sT2}, v5")
        a(f"v_lshrrev_b32 v6, 5, v{vLANE}")
        a(f"v_mul_u32_u24 v27, {PHI_ROW}, v5")
        a("v_mul_u32_u24 v7, 40, v6")
        a("v_add_u32 v27, v27, v7")
        a(f"v_mul_u32_u24 v28, {V_ROW}, v5")
        a("v_lshl_add_u32 v28, v6, 3, v28")
        a(f"v_add_u32 v28, {L_V}, v28")
        self.cvtP(P, 0)
        a("s_waitcnt lgkmcnt(0)")
        self.feat_mfma(D[0], P, 0, 40)
        self.feat_mfma(D[1], P, 1, 48)
        self.rd_af(4, 40); self.rd_af(6, 48)
        a("s_barrier")
        self.ts(11)
        for t in range(5):
            for i in range(2):
                G_ = 2 * t + i
                r = ACC + 16 * t + 8 + 4 * i
                for e in range(4): a(f"v_mul_f32 v{r+e}, v{r+e}, v{vRSTD}")
                a(f"v_cvt_pk_bf16_f32 v{162+2*(G_&1)}, v{r}, v{r+1}")
                a(f"v_cvt_pk_bf16_f32 v{163+2*(G_&1)}, v{r+2}, v{r+3}")
                a(f"ds_write_b64 v28, v[{162+2*(G_&1)}:{163+2*(G_&1)}] offset:{16*G_}")
        for p in range(4):
            self.softmax10(D[p & 1], E, PK, 25, T)
            if p < 2:
                a("s_waitcnt lgkmcnt(0)")
                self.feat_mfma(D[p & 1], P, p + 2, 40 + 8 * p)
            for i in range(5):
                a(f"ds_write_b64 v27, v[{PK+2*i}:{PK+2*i+1}] offset:{p*80 + i*8}")
        a("s_waitcnt lgkmcnt(0)")
        a("s_barrier")
        self.ts(3)
        a(f"s_lshr_b32 s{sT2}, s{sWAVE}, 1")
        a(f"s_and_b32 s{sT3}, s{sWAVE}, 1")
        a(f"v_lshrrev_b32 v5, 4, v{vLANE}")
        a("v_and_b32 v6, 1, v5")
        a("v_lshrrev_b32 v5, 1, v5")
        a(f"v_bfe_u32 v7, v{vLANE}, 2, 2")
        a("v_lshl_add_u32 v5, v5, 3, v7")
        a(f"v_and_b32 v7, 3, v{vLANE}")
        a(f"s_mul_i32 s{sT4}, s{sT2}, 40")
        a("v_lshlrev_b32 v8, 3, v7")
        a(f"v_add_u32 v8, s{sT4}, v8")
        a(f"s_add_u32 s{sT5}, s{sT4}, 32")
        a(f"v_mov_b32 v9, s{sT5}")
        a("v_cmp_eq_u32 vcc, 0, v6")
        a("v_cndmask_b32 v8, v9, v8, vcc")
        a(f"v_mul_u32_u24 v9, {V_ROW}, v5")
        a("v_add_u32 v8, v8, v9")
        a(f"v_add_u32 v32, {L_V}, v8")
        a("v_cmp_ne_u32 vcc, 0, v7")
        a("v_cndmask_b32 v2, 0, v6, vcc")
        a("v_cmp_eq_u32 vcc, 0, v2")
        a(f"v_mov_b32 v3, {L_ONES}")
        a("v_cndmask_b32 v32, v3, v32, vcc")
        a(f"v_mov_b32 v3, {4*V_ROW}")
        a("v_cndmask_b32 v35, 0, v3, vcc")
        a(f"s_lshl_b32 s{sT5}, s{sT3}, 3")
        a("v_lshl_add_u32 v8, v6, 2, v7")
        a(f"v_add_u32 v8, s{sT5}, v8")
        a("v_min_u32 v8, 9, v8")
        a("v_lshlrev_b32 v8, 3, v8")
        a(f"s_mul_i32 s{sT4}, s{sT2}, 80")
        a(f"v_add_u32 v8, s{sT4}, v8")
        a(f"v_mul_u32_u24 v9, {PHI_ROW}, v5")
        a("v_add_u32 v33, v8, v9")
        a(f"v_add_u32 v34, {8*16*PHI_ROW}, v33")
        KD = 104
        def rd(s_, buf):
            r = 64 + 8 * buf
            a(f"ds_read_b64_tr_b16 v[{r}:{r+1}], v32")
            a("v_add_u32 v32, v32, v35")
            a(f"ds_read_b64_tr_b16 v[{r+2}:{r+3}], v32")
            a("v_lshl_add_u32 v32, v35, 1, v32")
            a("v_add_u32 v32, v32, v35")
            bb, so = (33, s_) if s_ < 8 else (34, s_ - 8)
            a(f"ds_read_b64_tr_b16 v[{r+4}:{r+5}], v{bb} offset:{so*16*PHI_ROW}")
            a(f"ds_read_b64_tr_b16 v[{r+6}:{r+7}], v{bb} offset:{so*16*PHI_ROW + 4*PHI_ROW}")
        rd(0, 0); rd(1, 1); rd(2, 2)
        for s_ in range(16):
            buf = s_ % 3
            r = 64 + 8 * buf
            n = 4 * min(2, 15 - s_)
            a(f"s_waitcnt lgkmcnt({n})")
            c = "0" if s_ == 0 else f"v[{KD}:{KD+15}]"
            a(f"v_mfma_f32_32x32x16_bf16 v[{KD}:{KD+15}], v[{r}:{r+3}], v[{r+4}:{r+7}], {c}")
            if s_ + 3 < 16: rd(s_ + 3, buf)
        a(f"v_and_b32 v5, 31, v{vLANE}")
        a(f"s_lshl_b32 s{sT5}, s{sT3}, 5")
        a(f"v_add_u32 v5, s{sT5}, v5")
        a(f"v_lshrrev_b32 v6, 5, v{vLANE}")
        a("v_mul_u32_u24 v7, 160, v6")
        a("v_add_u32 v7, v7, v5")
        a("v_lshlrev_b32 v7, 2, v7")
        a(f"v_mov_b32 v8, {OOB}")
        a("v_cmp_gt_u32 vcc, 40, v5")
        a("v_cndmask_b32 v7, v8, v7, vcc")
        a("v_cmp_eq_u32 vcc, 0, v6")
        a("v_cndmask_b32 v9, v8, v7, vcc")
        a(f"s_lshl_b32 s{sT4}, s{sJOB}, 2")
        a(f"s_add_u32 s{sT4}, s{sT4}, s{sT2}")
        a(f"s_lshl_b32 s{sT4}, s{sT4}, 12")
        a(f"s_add_u32 s{sT4}, s{sT4}, {KV_OFF}")
        for r in range(12):
            off = (8 * (r >> 2) + (r & 3)) * 160
            v = 7 if r <= 8 else 9
            a(f"buffer_atomic_add_f32 v{KD+r}, v{v}, {srd(sWS)}, s{sT4} offen offset:{off}")
        a("s_barrier")
        self.p2_pref_begin()
        a(f"s_cmp_eq_u32 s{sP2OK}, 0")
        a(f"s_cselect_b32 s{sA}, s{sOOB}, s{sA}")
        NEARLY = 4
        for i in range(NEARLY): self.p2_pref(i)
        a(f"s_waitcnt vmcnt({NEARLY})")
        a("s_barrier")
        a(f"s_lshl_b32 s{sT2}, s{sJOB}, 8")
        a(f"s_add_u32 s{sT2}, s{sT2}, {CNT_OFF + 16*256}")
        self.arrive()
        self.ts(4)
        for i in range(NEARLY, 20): self.p2_pref(i)

    def epi_q(self):
        a = self.a
        P0, P1 = 60, 82
        D = [104, 120]
        E = 136
        T = 32
        PH = 160
        a(f"v_mul_f32 v25, {f2u(LOG2E):#x}, v{vRSTD}")
        a(f"v_lshlrev_b32 v30, 4, v{vLANE}")
        a(f"v_add_u32 v30, {L_WPHI}, v30")
        self.rd_af(0, 40); self.rd_af(2, 48)
        self.cvtP(P0, 0)
        self.cvtP(P1, 1)
        a("s_waitcnt lgkmcnt(0)")
        self.feat_mfma(D[0], P0, 0, 40)
        self.feat_mfma(D[1], P0, 1, 48)
        for h in range(8):
            hn = h + 2
            if hn < 8: self.rd_af((hn >> 2) * 8 + 2 * (hn & 3), 40 + 8 * (hn & 1))
            self.softmax10(D[h & 1], E, PH + 12 * h, 25, T)
            a(f"v_mov_b32 v{PH+12*h+10}, 0"); a(f"v_mov_b32 v{PH+12*h+11}, 0")
            if hn < 8:
                a("s_waitcnt lgkmcnt(0)")
                self.feat_mfma(D[h & 1], P0 if hn < 4 else P1, hn & 3, 40 + 8 * (hn & 1))
        self.ts(3)
        a(f"v_bfe_u32 v2, v{vLANE}, 3, 2")
        a(f"v_and_b32 v3, 3, v{vLANE}")
        a("v_lshl_add_u32 v2, v2, 2, v3")
        a(f"v_bfe_u32 v3, v{vLANE}, 2, 1")
        a("v_lshl_add_u32 v3, v2, 1, v3")
        a("v_mov_b32 v4, 20")
        a("v_cmp_eq_u32 vcc, 10, v2")
        a("v_cndmask_b32 v3, v3, v4, vcc")
        a("v_mul_u32_u24 v3, 160, v3")
        a(f"v_lshrrev_b32 v4, 5, v{vLANE}")
        a("v_mul_u32_u24 v4, 80, v4")
        a("v_add_u32 v3, v3, v4")
        a(f"v_mov_b32 v4, {OOB}")
        a("v_cmp_gt_u32 vcc, 11, v2")
        a("v_cndmask_b32 v38, v4, v3, vcc")
        a(f"v_lshlrev_b32 v39, 4, v{vLANE}")
        a(f"s_cmp_eq_u32 s{sWAVE}, 0")
        a("s_cbranch_scc0 L_q_nopoll")
        a(f"s_lshl_b32 s{sT2}, s{sJOB}, 9")
        a(f"s_add_u32 s{sT2}, s{sT2}, {CNT_OFF + 16*256}")
        a(f"s_add_u32 s{sT3}, s{sT2}, 256")
        self.poll2(sT2, sT3, 8)
        a.label("L_q_nopoll")
        a("s_barrier")
        self.ts(4)
        a(f"s_lshl_b32 s{sT4}, s{sJOB}, 3")
        a(f"s_add_u32 s{sT4}, s{sT4}, s{sWAVE}")
        a(f"s_lshl_b32 s{sT4}, s{sT4}, 12")
        a(f"s_add_u32 s{sT4}, s{sT4}, {KV_OFF}")
        for s_ in range(3):
            a(f"buffer_load_dwordx4 v[{104+8*s_}:{107+8*s_}], v38, {srd(sWS)}, s{sT4} offen offset:{32*s_} sc1")
            a(f"buffer_load_dwordx4 v[{108+8*s_}:{111+8*s_}], v38, {srd(sWS)}, s{sT4} offen offset:{32*s_+16} sc1")
        a(f"s_mul_i32 s{sT5}, s{sWAVE}, 3072")
        a(f"v_add_u32 v5, s{sT5}, v39")
        for s_ in range(3):
            a(f"s_waitcnt vmcnt({4-2*s_})")
            for d in range(4):
                a(f"v_cvt_pk_bf16_f32 v{136+4*s_+d}, v{104+8*s_+2*d}, v{105+8*s_+2*d}")
            a(f"ds_write_b128 v5, v[{136+4*s_}:{139+4*s_}] offset:{L_KVA + s_*1024}")
        a("s_waitcnt lgkmcnt(0)")
        a("s_barrier")
        OF = 60
        def rdA(h):
            b = 104 + 12 * (h & 1)
            for s_ in range(3): a(f"ds_read_b128 v[{b+4*s_}:{b+4*s_+3}], v39 offset:{L_KVA + (h*3+s_)*1024}")
        OD = [128, 144]
        a(f"s_lshl_b32 s{sT2}, s{sRB}, 3")
        a(f"s_add_u32 s{sT2}, s{sT2}, s{sWAVE}")
        a(f"s_mul_i32 s{sT2}, s{sT2}, 136")
        a(f"s_mul_i32 s{sT3}, s{sJOB}, 10")
        a(f"s_add_u32 s{sT2}, s{sT2}, s{sT3}")
        a(f"s_add_u32 s{sT2}, s{sT2}, 96")
        a(f"s_lshl_b32 s{sT2}, s{sT2}, 10")
        rdA(0)
        stored = 0
        def stores(upto):
            nonlocal stored
            while stored < upto:
                f = stored
                if f and f % 4 == 0: a(f"s_add_u32 s{sT2}, s{sT2}, 4096")
                a(f"buffer_store_dwordx4 v[{OF+4*f}:{OF+4*f+3}], v39, {srd(sWS)}, s{sT2} offen offset:{(f&3)*1024} sc1")
                stored += 1
        for h in range(8):
            if h < 7: rdA(h + 1)
            b = 104 + 12 * (h & 1)
            a(f"s_waitcnt lgkmcnt({3 if h < 7 else 0})")
            d = OD[h & 1]
            for s_ in range(3):
                c = "0" if s_ == 0 else f"v[{d}:{d+15}]"
                a(f"v_mfma_f32_32x32x16_bf16 v[{d}:{d+15}], v[{b+4*s_}:{b+4*s_+3}], v[{PH+12*h+4*s_}:{PH+12*h+4*s_+3}], {c}")
            if h >= 1:
                self.o_finish(OD[(h - 1) & 1], OF + 5 * (h - 1))
                stores((5 * h) // 4)
        self.o_finish(OD[7 & 1], OF + 35)
        stores(10)
        a("s_waitcnt vmcnt(0)")
        a("s_barrier")
        a(f"s_lshl_b32 s{sT2}, s{sRB}, 8")
        a(f"s_add_u32 s{sT2}, s{sT2}, {CNT_OFF + 8*256}")
        self.arrive()
        self.ts(5)

    def o_finish(self, d, dst):
        a = self.a
        a(f"v_add_f32 v37, {f2u(1e-6):#x}, v{d+10}")
        a("v_rcp_f32 v37, v37")
        for i in range(10): a(f"v_mul_f32 v{d+i}, v{d+i}, v37")
        for i in range(5): a(f"v_cvt_pk_bf16_f32 v{dst+i}, v{d+2*i}, v{d+2*i+1}")

    def p2_main(self):
        a = self.a
        DEPTH = self.o.get("depth", 16)
        a(f"s_cmp_eq_u32 s{sP2OK}, 0")
        a("s_cbranch_scc1 L_end")
        self.ts(6)
        a(f"s_mul_i32 s{sT2}, s{sRB2}, 96")
        a(f"s_lshr_b32 s{sC}, s{sT2}, 8")
        a(f"s_add_u32 s{sT2}, s{sT2}, 95")
        a(f"s_min_u32 s{sT2}, s{sT2}, 2047")
        a(f"s_lshr_b32 s{sD}, s{sT2}, 8")
        a(f"s_cmp_ge_u32 s{sWAVE}, 6")
        a("s_cbranch_scc1 L_p2_loader")
        HB, WB, PA, XR = 128, 64, 192, 80
        vA0, vA1, vL16, vRES = 10, 11, 12, 13
        a(f"s_cmp_ge_u32 s{sWAVE}, 3")
        a(f"s_cselect_b32 s{sKH}, 1, 0")
        a(f"s_mul_i32 s{sT3}, s{sKH}, 3")
        a(f"s_sub_u32 s{sTT}, s{sWAVE}, s{sT3}")
        a(f"s_mul_i32 s{sTTG}, s{sRB2}, 3")
        a(f"s_add_u32 s{sTTG}, s{sTTG}, s{sTT}")
        self.build_srd(sX, PWS, HO_SIZE)
        self.build_srd(sW, PX, 2621440)
        a(f"s_mul_i32 s{sT5}, s{sTTG}, 136")
        a(f"s_mul_i32 s{sXOFF}, s{sKH}, 48")
        a(f"s_add_u32 s{sXOFF}, s{sXOFF}, s{sT5}")
        a(f"s_lshl_b32 s{sXOFF}, s{sXOFF}, 10")
        a(f"s_mul_i32 s{sWOFF}, s{sKH}, 20")
        a(f"s_add_u32 s{sWOFF}, s{sWOFF}, s{sT5}")
        a(f"s_add_u32 s{sWOFF}, s{sWOFF}, 96")
        a(f"s_lshl_b32 s{sWOFF}, s{sWOFF}, 10")
        a(f"v_lshlrev_b32 v{vL16}, 4, v{vLANE}")
        a(f"v_and_b32 v2, 31, v{vLANE}")
        a("v_mul_u32_u24 v2, 1280, v2")
        a(f"v_lshrrev_b32 v3, 5, v{vLANE}")
        a(f"v_lshl_add_u32 v{vRES}, v3, 3, v2")
        a(f"s_mul_i32 s{sT5}, s{sTTG}, {32*1280}")
        a(f"s_lshl_b32 s{sTMP}, s{sCB}, 7")
        a(f"s_add_u32 s{sT5}, s{sT5}, s{sTMP}")
        a(f"s_lshl_b32 s{sTMP}, s{sKH}, 6")
        a(f"s_add_u32 s{sWCH}, s{sT5}, s{sTMP}")
        for q in range(4):
            a(f"buffer_load_dwordx2 v[{XR+2*q}:{XR+2*q+1}], v{vRES}, {srd(sW)}, s{sWCH} offen offset:{q*16}")
        a(f"v_lshrrev_b32 v2, 5, v{vLANE}")
        a(f"v_bfe_u32 v3, v{vLANE}, 2, 2")
        a("v_lshl_add_u32 v2, v2, 3, v3")
        a("v_lshlrev_b32 v2, 7, v2")
        a(f"v_bfe_u32 v4, v{vLANE}, 4, 1")
        a("v_lshlrev_b32 v4, 1, v4")
        a(f"v_bfe_u32 v5, v{vLANE}, 1, 1")
        a("v_add_u32 v4, v4, v5")
        a("v_bfe_u32 v5, v3, 1, 1")
        a("v_lshlrev_b32 v5, 2, v5")
        a("v_xor_b32 v4, v4, v5")
        a("v_lshl_add_u32 v2, v4, 4, v2")
        a(f"v_and_b32 v5, 1, v{vLANE}")
        a("v_lshl_add_u32 v2, v5, 3, v2")
        a(f"s_lshl_b32 s{sTMP}, s{sKH}, 13")
        a(f"v_add_u32 v{vA0}, s{sTMP}, v2")
        a(f"v_xor_b32 v{vA1}, 64, v{vA0}")
        for i in range(32): a(f"v_mov_b32 v{PA+i}, 0")
        a(f"s_cmp_eq_u32 s{sWAVE}, 0")
        a("s_cbranch_scc0 L_p2_nopoll")
        a(f"s_lshl_b32 s{sT2}, s{sC}, 8")
        a(f"s_add_u32 s{sT2}, s{sT2}, {CNT_OFF}")
        a(f"s_lshl_b32 s{sT3}, s{sD}, 8")
        a(f"s_add_u32 s{sT3}, s{sT3}, {CNT_OFF}")
        self.poll2(sT2, sT3, 20)
        a.label("L_p2_nopoll")
        a("s_waitcnt vmcnt(0)")
        a("s_barrier")
        self.ts(7)
        issued = [0]
        def hload(n):
            assert n == issued[0]
            issued[0] += 1
            if n < 48: base, k = sXOFF, n
            else: base, k = sWOFF, n - 48
            if k and k % 4 == 0: a(f"s_add_u32 s{base}, s{base}, 4096")
            b = HB + 4 * (n % DEPTH)
            a(f"buffer_load_dwordx4 v[{b}:{b+3}], v{vL16}, {srd(sX)}, s{base} offen offset:{(k&3)*1024}" + ("" if self.o.get("p2plain") else " sc1"))
        for n in range(DEPTH): hload(n)
        cur = {"slot": 0}
        def wread(n):
            if n >= 68: return
            slot = (n >> 2) % 10
            if slot != cur["slot"]:
                d = (slot - cur["slot"]) * 16384
                a(f"v_add_u32 v{vA0}, {d & 0xffffffff:#x}, v{vA0}")
                a(f"v_add_u32 v{vA1}, {d & 0xffffffff:#x}, v{vA1}")
                cur["slot"] = slot
            for nt in range(2):
                b = WB + 8 * (n & 1) + 4 * nt
                va = vA0 if nt == 0 else vA1
                a(f"ds_read_b64_tr_b16 v[{b}:{b+1}], v{va} offset:{(n&3)*2048}")
                a(f"ds_read_b64_tr_b16 v[{b+2}:{b+3}], v{va} offset:{(n&3)*2048 + 512}")
        wread(0); wread(1)
        OST = 48
        for n in range(68):
            if n and n % 8 == 0 and n <= 56:
                if self.o.get("p2ts"): self.tsq(n // 8 + 19)
                a("s_barrier")
            if n == OST:
                while issued[0] < min(68, n + DEPTH) and issued[0] - DEPTH < n: hload(issued[0])
            nv = issued[0] - (n + 1)
            nl = 4 if n < 67 else 0
            a(f"s_waitcnt vmcnt({min(nv, 63)}) lgkmcnt({nl})")
            hb = HB + 4 * (n % DEPTH)
            for nt in range(2):
                b = WB + 8 * (n & 1) + 4 * nt
                a(f"v_mfma_f32_32x32x16_bf16 v[{PA+16*nt}:{PA+16*nt+15}], v[{b}:{b+3}], v[{hb}:{hb+3}], v[{PA+16*nt}:{PA+16*nt+15}]")
            m = n + DEPTH
            if m < 68 and m == issued[0] and (m < 48 or n >= OST): hload(m)
            wread(n + 2)
        assert issued[0] == 68
        self.ts(8)
        a("s_barrier")
        a(f"s_lshl_b32 s{sT2}, s{sTT}, 1")
        a(f"s_add_u32 s{sT2}, s{sT2}, s{sKH}")
        a(f"s_lshl_b32 s{sT3}, s{sT2}, 12")
        a(f"s_xor_b32 s{sT4}, s{sT3}, 4096")
        a(f"v_add_u32 v2, s{sT3}, v{vL16}")
        a(f"v_add_u32 v3, s{sT4}, v{vL16}")
        a(f"s_cmp_eq_u32 s{sKH}, 0")
        a("s_cbranch_scc0 L_p2_kh1")
        for q in range(4): a(f"ds_write_b128 v2, v[{PA+16+4*q}:{PA+16+4*q+3}] offset:{q*1024}")
        a("s_branch L_p2_x")
        a.label("L_p2_kh1")
        for q in range(4): a(f"ds_write_b128 v2, v[{PA+4*q}:{PA+4*q+3}] offset:{q*1024}")
        for i in range(16): a(f"v_mov_b32 v{PA+i}, v{PA+16+i}")
        a.label("L_p2_x")
        self.build_srd(sT0, POUT, 2621440)
        a(f"v_and_b32 v4, 31, v{vLANE}")
        a("v_mul_u32_u24 v4, 1280, v4")
        a(f"v_lshrrev_b32 v5, 5, v{vLANE}")
        a("v_lshl_add_u32 v4, v5, 4, v4")
        for q in range(4):
            for h2 in range(2):
                x = XR + 2 * q + h2
                a(f"v_lshlrev_b32 v6, 16, v{x}")
                a(f"v_and_b32 v7, 0xffff0000, v{x}")
                a(f"v_add_f32 v{PA+4*q+2*h2}, v{PA+4*q+2*h2}, v6")
                a(f"v_add_f32 v{PA+4*q+2*h2+1}, v{PA+4*q+2*h2+1}, v7")
        a("s_waitcnt lgkmcnt(0)")
        a("s_barrier")
        for q in range(4): a(f"ds_read_b128 v[{PA+16+4*q}:{PA+16+4*q+3}], v3 offset:{q*1024}")
        O = 64
        for q in range(4):
            a(f"s_waitcnt lgkmcnt({3-q})")
            for i in range(4): a(f"v_add_f32 v{PA+4*q+i}, v{PA+4*q+i}, v{PA+16+4*q+i}")
            a(f"v_cvt_pk_bf16_f32 v{O+2*q}, v{PA+4*q}, v{PA+4*q+1}")
            a(f"v_cvt_pk_bf16_f32 v{O+2*q+1}, v{PA+4*q+2}, v{PA+4*q+3}")
        for pr in range(2):
            a(f"v_permlane32_swap_b32 v{O+4*pr}, v{O+4*pr+2}")
            a(f"v_permlane32_swap_b32 v{O+4*pr+1}, v{O+4*pr+3}")
        for pr in range(2):
            a(f"buffer_store_dwordx4 v[{O+4*pr}:{O+4*pr+3}], v4, {srd(sT0)}, s{sWCH} offen offset:{pr*32}")
        self.ts(9)
        if self.o.get("p2ts"):
            a("s_waitcnt lgkmcnt(0)")
            for k in range(7): self.ts(k, src=4 + 2 * k)
        a("s_branch L_end")
        a.label("L_p2_loader")
        a(f"s_sub_u32 s{sKH}, s{sWAVE}, 6")
        a(f"s_lshl_b32 s{sXDST}, s{sKH}, 13")
        a(f"s_lshl_b32 s{sXOFF}, s{sCB}, 7")
        a(f"s_mul_i32 s{sT3}, s{sKH}, {48*16*1280}")
        a(f"s_add_u32 s{sWOFF}, s{sXOFF}, s{sT3}")
        a(f"s_mul_i32 s{sT3}, s{sKH}, {20*16*1280}")
        a(f"s_add_u32 s{sWDST}, s{sXOFF}, s{sT3}")
        self.build_srd(sX, PWS, HO_SIZE)
        a(f"v_lshrrev_b32 v2, 3, v{vLANE}")
        a(f"s_lshl_b32 s{sT2}, s{sKH}, 4")
        a(f"v_add_u32 v2, s{sT2}, v2")
        a(f"v_and_b32 v3, 7, v{vLANE}")
        a("v_lshlrev_b32 v3, 7, v3")
        a(f"s_mul_i32 s{sTTG}, s{sRB2}, 3")
        for i in range(2):
            a(f"v_add_u32 v4, {8*i}, v2")
            a("v_mul_u32_u24 v5, 6554, v4")
            a("v_lshrrev_b32 v5, 16, v5")
            a("v_mul_u32_u24 v6, 10, v5")
            a("v_sub_u32 v6, v4, v6")
            a("v_mul_u32_u24 v6, 10, v6")
            a(f"v_add_u32 v6, s{sCB}, v6")
            a(f"v_add_u32 v5, s{sTTG}, v5")
            a("v_mul_u32_u24 v5, 136, v5")
            a("v_add_u32 v5, v5, v6")
            a("v_lshlrev_b32 v5, 10, v5")
            a(f"v_add_u32 v{10+i}, v5, v3")
            a(f"v_mov_b32 v7, {OOB}")
            a("v_cmp_gt_u32 vcc, 96, v6")
            a(f"v_cndmask_b32 v{10+i}, v7, v{10+i}, vcc")
            a("v_cmp_gt_u32 vcc, 30, v4")
            a(f"v_cndmask_b32 v{10+i}, v7, v{10+i}, vcc")
        a(f"v_lshrrev_b32 v2, 3, v{vLANE}")
        a(f"s_lshl_b32 s{sT2}, s{sKH}, 3")
        a(f"v_add_u32 v4, s{sT2}, v2")
        a("v_lshrrev_b32 v5, 2, v4")
        a("v_and_b32 v6, 3, v4")
        a("v_mul_u32_u24 v6, 10, v6")
        a(f"v_add_u32 v6, s{sCB}, v6")
        a("v_add_u32 v6, 96, v6")
        a(f"v_add_u32 v5, s{sTTG}, v5")
        a("v_mul_u32_u24 v5, 136, v5")
        a("v_add_u32 v5, v5, v6")
        a("v_lshlrev_b32 v5, 10, v5")
        a("v_add_u32 v12, v5, v3")
        a(f"v_mov_b32 v7, {OOB}")
        a("v_cmp_gt_u32 vcc, 136, v6")
        a("v_cndmask_b32 v12, v7, v12, vcc")
        a("v_cmp_gt_u32 vcc, 12, v4")
        a("v_cndmask_b32 v12, v7, v12, vcc")
        a("s_waitcnt vmcnt(0)")
        a("s_barrier")
        if not self.o.get("notouch"):
            a(f"buffer_load_dword v14, v10, {srd(sX)}, 0 offen")
            a(f"buffer_load_dword v15, v11, {srd(sX)}, 0 offen")
        def refill(st):
            for q in range(8):
                a(f"s_add_u32 m0, s{sXDST}, {(st % 10)*16384 + q*1024}")
                if st < 12:
                    a(f"s_add_u32 s{sT5}, s{sWOFF}, {(4*st + (q>>1))*16*1280}")
                    a(f"buffer_load_dwordx4 v{vP2+(q&1)}, {srd(sT0)}, s{sT5} offen lds")
                else:
                    a(f"s_add_u32 s{sT5}, s{sWDST}, {(4*(st-12) + (q>>1))*16*1280}")
                    a(f"buffer_load_dwordx4 v{vP2+2+(q&1)}, {srd(sT1)}, s{sT5} offen lds")
        q_ = (lambda k: self.tsq(20 + k)) if self.o.get("p2ts") else (lambda k: None)
        q_(0); a("s_barrier"); refill(10); refill(11)
        q_(1); a("s_barrier"); refill(12); refill(13)
        q_(2); a("s_barrier"); refill(14); refill(15)
        a("s_waitcnt vmcnt(32)")
        q_(3); a("s_barrier"); refill(16)
        a("s_waitcnt vmcnt(24)")
        q_(4); a("s_barrier")
        a("s_waitcnt vmcnt(0)")
        if self.o.get("noopoll"): a("s_branch L_p2_nopo")
        a(f"s_cmp_eq_u32 s{sWAVE}, 6")
        a("s_cbranch_scc0 L_p2_nopo")
        a(f"s_lshl_b32 s{sT2}, s{sC}, 8")
        a(f"s_add_u32 s{sT2}, s{sT2}, {CNT_OFF + 8*256}")
        a(f"s_lshl_b32 s{sT3}, s{sD}, 8")
        a(f"s_add_u32 s{sT3}, s{sT3}, {CNT_OFF + 8*256}")
        self.poll2(sT2, sT3, 4)
        a.label("L_p2_nopo")
        q_(5); a("s_barrier")
        if not self.o.get("notouch"):
            a(f"buffer_load_dword v14, v12, {srd(sX)}, 0 offen")
        q_(6); a("s_barrier")
        a("s_barrier")
        a("s_barrier")
        if self.o.get("p2ts"):
            a("s_waitcnt lgkmcnt(0)")
            for k in range(7): self.ts(k, src=4 + 2 * k)
        a("s_branch L_end")

    def gen(self):
        a = self.a
        self.prologue()
        self.mainloop()
        self.ts(2)
        if self.o.get("cyc"):
            a("s_memtime s[26:27]")
            self.ts(15, src=26)
        if self.o.get("loopts"):
            a(f"s_lshl_b32 s{sT2}, s2, 3")
            a(f"s_add_u32 s{sT2}, s{sT2}, s{sWAVE}")
            a(f"s_lshl_b32 s{sT2}, s{sT2}, 8")
            a(f"s_add_u32 s{sT2}, s{sT2}, {DBG_OFF + 256*8*64}")
            a(f"v_lshlrev_b32 v2, 2, v{vLANE}")
            a(f"buffer_store_dword v125, v2, {srd(sWS)}, s{sT2} offen")
        self.mean_corr()
        a(f"s_cmp_eq_u32 s{sTYPE}, 2")
        a("s_cbranch_scc1 L_ffn")
        a(f"s_cmp_eq_u32 s{sTYPE}, 1")
        a("s_cbranch_scc1 L_q")
        self.epi_kv()
        a("s_branch L_p2")
        a.label("L_q")
        self.epi_q()
        a("s_branch L_end")
        a.label("L_ffn")
        self.epi_ffn()
        a.label("L_p2")
        if self.o.get("nop2"):
            a("s_branch L_end")
        self.p2_main()
        lines = a.l + ["s_branch L_end"] + self.ool.l + ["L_end:", "s_endpgm"]
        lines, added = pad_hazards(lines)
        body = "\n".join(("    " + l if not l.endswith(":") else l) for l in lines)
        hdr = open("cdna_kernels/" + KNAME[:-7] + ".s.ref").read().split("; Override launch geometry")[0]
        txt = hdr + f"""; Fused single-launch kernel: LN + QKV/FFN GEMM + hedgehog linear attention + output GEMM (generated by my own script).
; @launch grid=(256,1,1) block=(512,1,1) lds={LDS_TOTAL}
.amdgcn_target "amdgcn-amd-amdhsa--gfx950"
.text
.globl {KNAME}
.p2align 8
.type {KNAME},@function
{KNAME}:
{body}
.section .rodata,"a"
.p2align 6
.amdhsa_kernel {KNAME}
  .amdhsa_next_free_vgpr 256
  .amdhsa_next_free_sgpr 102
  .amdhsa_accum_offset 256
  .amdhsa_group_segment_fixed_size 0
  .amdhsa_kernarg_size 88
  .amdhsa_user_sgpr_count 2
  .amdhsa_user_sgpr_kernarg_segment_ptr 1
  .amdhsa_system_sgpr_workgroup_id_x 1
.end_amdhsa_kernel
"""
        return txt, added

if __name__ == "__main__":
    import argparse
    ap = argparse.ArgumentParser()
    ap.add_argument("-o", default="k.s")
    for f in ("dev", "ts", "nop2", "p2plain", "noopoll", "nowarm", "p2ts", "loopts", "prots", "xw", "nocs", "notouch", "cyc", "nostag", "x_nodma", "x_notch", "x_lg8", "x_nospec", "cpf"): ap.add_argument("--" + f, action="store_true")
    ap.add_argument("--tsset", default=None)
    ap.add_argument("--depth", type=int, default=16)
    ap.add_argument("--specmask", type=lambda x: int(x, 0), default=None)
    args = ap.parse_args()
    o = dict(dev=args.dev or args.ts, ts=args.ts, nop2=args.nop2, p2plain=args.p2plain, noopoll=args.noopoll, nowarm=args.nowarm, depth=args.depth, p2ts=args.p2ts, loopts=args.loopts, prots=args.prots, xw=args.xw, nocs=args.nocs, notouch=args.notouch, cyc=args.cyc, nostag=args.nostag, x_nodma=args.x_nodma, x_notch=args.x_notch, x_lg8=args.x_lg8, x_nospec=args.x_nospec, cpf=args.cpf, specmask=args.specmask)
    if args.tsset: o["tsset"] = set(int(x) for x in args.tsset.split(","))
    g = G(o)
    txt, added = g.gen()
    open(args.o, "w").write(txt)
    print("written", args.o, "lines", txt.count("\n"), "hazard pad states", added)
```

```python
import sys, struct
sys.path.insert(0, "dev")
from asmlib import Asm, pad_hazards

KNAME = "parallel_sum__linear_kernel_hedgehog__swiglu_ffn__prompt_kernel"

HO_TT = 136 * 1024
HO_SIZE = 64 * HO_TT
KV_OFF = HO_SIZE
KV_SIZE = 32 * 4096
ST_OFF = KV_OFF + KV_SIZE
ST_SIZE = 2048 * 8
CNT_OFF = ST_OFF + ST_SIZE
CSP_OFF = CNT_OFF + 24 * 256
CSP_SIZE = 32 * 8 * 640
WS_SIZE = CSP_OFF + CSP_SIZE
DBG_OFF = WS_SIZE
DBG_SIZE = 256 * 8 * 64 + 256 * 8 * 256 + 4096
OOB = 0x40000000
LOG2E = 1.4426950408889634

XST = 32768
WARR = 10240
WA1 = WARR + 128
WST = 2 * WARR + 128
WBASE = 3 * XST
L_ZERO = WBASE + 3 * WST
L_ONES = L_ZERO + 16
L_CSP = L_ZERO + 128
L_DUMMY = L_CSP + 2560
LDS_TOTAL = 163840
assert L_DUMMY + 1024 == LDS_TOTAL
L_WPHI = 122880
L_PHI = 0
PHI_ROW = 320
L_V = 81920
V_ROW = 160
L_KVA = 0

PX, PQKV, PPHI, PWO, PBX, PWG, PWU, PWD, POUT, PDBG, PWS = 4, 6, 8, 10, 12, 14, 16, 18, 20, 22, 24
sX, sW, sWS, sDBG, sT0, sT1 = 28, 32, 36, 40, 44, 48
sWAVE, sRB, sTYPE, sJOB, sJIDX, sC = 52, 53, 54, 55, 56, 57
sXOFF, sXDST, sTMP, sWOFF, sWDST = 58, 59, 60, 61, 62
sSTRIDE, sWSTp, sWSTm, sXSTp, sXSTm, sMASK = 63, 64, 65, 66, 67, 68
sWEND, sXEND, sWBEG, sXBEG, sRST, sDW, sDX, sWCH = 69, 70, 71, 72, 73, 74, 75, 76
sW3F, sT2, sT3, sT4, sT5, sOOB, sSPEC = 77, 78, 79, 80, 81, 82, 83
sKH, sTT, sXCD, sTTG = 84, 85, 86, 87
sRB2, sCB = 88, 89
sTS = 90
sP2OK = 93
sA, sT0F, sE, sD = 94, 95, 96, 97
sENT = 100
sTCH = 12
sTCO, sTCS, sTCB, sTCN = 16, 17, 6, 7
vTCH = 9 + 12
vTCD = 123

def srd(r): return f"s[{r}:{r+3}]"
def f2u(x): return struct.unpack("<I", struct.pack("<f", x))[0]

vLANE = 1
vXA = [10, 11, 12, 13]
vWA = 14
vXS = [16, 17]
vWS = [18, 19, 20]
vSTAT = 22
vRSTD = 24
vPOLL = 24
AP = 32
WPHI = 52
BP = 60
CSL = 64
vP2 = 100
WRAW = 104
vKA, vKS, vKB0, vKB1, vAT0, vAT1, vPHW, vVW, vWPH, vQG, vL16g = 164, 165, 166, 167, 168, 169, 170, 171, 172, 173, 174
XF = [128, 132]
WF = 136
ACC = 176

class G:
    def __init__(self, opts):
        self.a = Asm()
        self.o = opts
        self.ool = Asm()
        self.ool._n = 100000

    def build_srd(self, r, ptr, nbytes, a=None):
        a = a or self.a
        a(f"s_mov_b32 s{r}, s{ptr}")
        a(f"s_mov_b32 s{r+1}, s{ptr+1}")
        a(f"s_mov_b32 s{r+2}, {nbytes}")
        a(f"s_mov_b32 s{r+3}, 0x00020000")

    def ts(self, idx, a=None, entry=False, src=None):
        if not self.o.get("ts"): return
        if self.o.get("tsset") is not None and idx not in self.o["tsset"]: return
        a = a or self.a
        if src is not None:
            a("s_waitcnt lgkmcnt(0)")
            a(f"s_mov_b32 s{sTS}, s{src}")
        elif entry: a(f"s_mov_b32 s{sTS}, s{sENT}")
        else: a(f"s_memrealtime s[{sTS}:{sTS+1}]")
        a(f"s_lshl_b32 s{sTS+2}, s2, 3")
        a(f"s_add_u32 s{sTS+2}, s{sTS+2}, s{sWAVE}")
        a(f"s_lshl_b32 s{sTS+2}, s{sTS+2}, 6")
        a(f"s_add_u32 s{sTS+2}, s{sTS+2}, {DBG_OFF + idx*4}")
        a(f"v_mov_b32 v3, {OOB}")
        a(f"v_cmp_eq_u32 vcc, 0, v{vLANE}")
        a(f"v_cndmask_b32 v3, v3, v{vLANE}, vcc")
        a("s_waitcnt lgkmcnt(0)")
        a(f"v_mov_b32 v2, s{sTS}")
        a(f"buffer_store_dword v2, v3, {srd(sWS)}, s{sTS+2} offen")
    def tsq(self, k):
        self.a(f"s_memrealtime s[{2*(k-20)+4}:{2*(k-20)+5}]")
    def nts(self, idxs):
        if not self.o.get("ts"): return 0
        return sum(1 for i in idxs if self.o.get("tsset") is None or i in self.o["tsset"])

    def xlane_sum(self, v, t, a=None):
        a = a or self.a
        a(f"v_mov_b32 v{t}, v{v}")
        a(f"v_permlane16_swap_b32 v{v}, v{t}")
        a(f"v_add_f32 v{v}, v{v}, v{t}")
        a(f"v_mov_b32 v{t}, v{v}")
        a(f"v_permlane32_swap_b32 v{v}, v{t}")
        a(f"v_add_f32 v{v}, v{v}, v{t}")
    def wave_sum(self, v, t):
        a = self.a
        for r in (8, 4, 2, 1):
            a(f"v_add_f32_dpp v{v}, v{v}, v{v} row_ror:{r} row_mask:0xf bank_mask:0xf")
        self.xlane_sum(v, t)

    def lane0_off(self, dst, a=None):
        a = a or self.a
        a(f"v_mov_b32 v{dst}, {OOB}")
        a(f"v_cmp_eq_u32 vcc, 0, v{vLANE}")
        a(f"v_cndmask_b32 v{dst}, v{dst}, v{vLANE}, vcc")

    def prologue(self):
        a = self.a
        if self.o.get("ts"): a(f"s_memrealtime s[{sENT}:{sENT+1}]")
        a(f"s_load_dwordx16 s[4:19], s[0:1], 0")
        a(f"s_load_dwordx4 s[20:23], s[0:1], 64")
        a(f"s_load_dwordx2 s[24:25], s[0:1], 80")
        a("s_cmp_ge_u32 s2, 256")
        a("s_cbranch_scc1 L_end")
        a("v_lshrrev_b32 v2, 6, v0")
        a(f"v_and_b32 v{vLANE}, 63, v0")
        a(f"v_readfirstlane_b32 s{sWAVE}, v2")
        a(f"s_and_b32 s{sXCD}, s2, 7")
        a(f"s_lshr_b32 s{sT2}, s2, 3")
        a(f"s_and_b32 s{sRB}, s{sXCD}, 1")
        a(f"s_lshl_b32 s{sRB}, s{sRB}, 2")
        a(f"s_and_b32 s{sT3}, s{sT2}, 3")
        a(f"s_add_u32 s{sRB}, s{sRB}, s{sT3}")
        a(f"s_lshr_b32 s{sD}, s{sT2}, 2")
        a(f"s_lshr_b32 s{sE}, s{sXCD}, 1")
        a(f"s_lshl_b32 s{sJIDX}, s{sE}, 3")
        a(f"s_add_u32 s{sJIDX}, s{sJIDX}, s{sD}")
        a(f"s_mul_i32 s{sT3}, s{sE}, 5")
        a(f"s_add_u32 s{sT3}, s{sT3}, s{sD}")
        a(f"s_sub_u32 s{sJOB}, s{sT3}, 3")
        a(f"s_mov_b32 s{sTYPE}, 2")
        a(f"s_cmp_eq_u32 s{sD}, 2")
        a(f"s_cselect_b32 s{sTYPE}, 1, s{sTYPE}")
        a(f"s_cselect_b32 s{sJOB}, s{sE}, s{sJOB}")
        a(f"s_lshl_b32 s{sT3}, s{sE}, 1")
        a(f"s_add_u32 s{sT3}, s{sT3}, s{sD}")
        a(f"s_cmp_lt_u32 s{sD}, 2")
        a(f"s_cselect_b32 s{sTYPE}, 0, s{sTYPE}")
        a(f"s_cselect_b32 s{sJOB}, s{sT3}, s{sJOB}")
        a(f"s_lshr_b32 s{sA}, s{sWAVE}, 2")
        a(f"s_mul_i32 s{sT3}, s{sJOB}, 5")
        a(f"s_lshl_b32 s{sT4}, s{sJOB}, 2")
        a(f"s_add_u32 s{sT4}, s{sT4}, 16")
        a(f"s_cmp_lt_u32 s{sJOB}, 16")
        a(f"s_cselect_b32 s{sT0F}, s{sT3}, s{sT4}")
        a(f"s_lshl_b32 s{sWOFF}, s{sT0F}, 5")
        a(f"s_mul_i32 s{sT3}, s{sJOB}, 160")
        a(f"s_mul_i32 s{sT4}, s{sA}, 1280")
        a(f"s_add_u32 s{sT3}, s{sT3}, s{sT4}")
        a(f"s_add_u32 s{sT3}, s{sT3}, 1280")
        a(f"s_cmp_eq_u32 s{sTYPE}, 0")
        a(f"s_cselect_b32 s{sWOFF}, s{sT3}, s{sWOFF}")
        a(f"s_mul_i32 s{sT3}, s{sJOB}, 320")
        a(f"s_mul_i32 s{sT4}, s{sA}, 160")
        a(f"s_add_u32 s{sT3}, s{sT3}, s{sT4}")
        a(f"s_cmp_eq_u32 s{sTYPE}, 1")
        a(f"s_cselect_b32 s{sWOFF}, s{sT3}, s{sWOFF}")
        a(f"s_movk_i32 s{sSTRIDE}, 3840")
        a(f"s_cmp_eq_u32 s{sTYPE}, 2")
        a(f"s_cselect_b32 s{sSTRIDE}, 3072, s{sSTRIDE}")
        a(f"s_lshl_b32 s{sWCH}, s{sSTRIDE}, 6")
        a(f"v_lshlrev_b32 v8, 5, v{vLANE}")
        a(f"v_mov_b32 v7, {OOB}")
        a(f"v_cmp_gt_u32 vcc, 40, v{vLANE}")
        a(f"v_cndmask_b32 v8, v7, v8, vcc")
        a(f"v_lshrrev_b32 v5, 4, v{vLANE}")
        a(f"v_and_b32 v6, 15, v{vLANE}")
        a(f"v_mul_u32_u24 v5, s{sSTRIDE}, v5")
        a(f"v_lshl_add_u32 v15, v6, 4, v5")
        a(f"v_cmp_gt_u32 vcc, 10, v6")
        a(f"v_cndmask_b32 v15, v7, v15, vcc")
        a(f"s_lshl_b32 s{sT2}, s{sRB}, 8")
        a(f"s_lshl_b32 s{sT3}, s{sJIDX}, 3")
        a(f"s_add_u32 s{sT2}, s{sT2}, s{sT3}")
        a(f"s_add_u32 s{sD}, s{sT2}, s{sWAVE}")
        a(f"s_mul_i32 s{sT2}, s{sD}, 1280")
        a(f"s_and_b32 s{sT3}, s{sWAVE}, 3")
        a(f"s_mul_i32 s{sT4}, s{sT3}, 20")
        a(f"s_mul_i32 s{sT5}, s{sRB}, 80")
        a(f"s_add_u32 s{sT4}, s{sT4}, s{sT5}")
        a(f"s_mul_i32 s{sT4}, s{sT4}, s{sSTRIDE}")
        a(f"s_add_u32 s{sKH}, s{sT4}, s{sWOFF}")
        a(f"s_lshl_b32 s{sTT}, s{sSTRIDE}, 2")
        a(f"v_lshrrev_b32 v3, 3, v{vLANE}")
        a(f"v_and_b32 v4, 7, v{vLANE}")
        a(f"v_lshrrev_b32 v5, 4, v{vLANE}")
        a(f"v_mul_u32_u24 v6, 1280, v3")
        a(f"v_xor_b32 v7, v5, v4")
        a(f"v_lshl_add_u32 v{vXS[0]}, v7, 4, v6")
        a(f"v_add_u32 v5, 4, v5")
        a(f"v_xor_b32 v7, v5, v4")
        a(f"v_lshl_add_u32 v{vXS[1]}, v7, 4, v6")
        a(f"s_lshl_b32 s{sT4}, s{sRB}, 8")
        a(f"s_lshl_b32 s{sT5}, s{sWAVE}, 5")
        a(f"s_add_u32 s{sT4}, s{sT4}, s{sT5}")
        a(f"s_mul_i32 s{sXOFF}, s{sT4}, 1280")
        a(f"s_lshl_b32 s{sXBEG}, s{sWAVE}, 12")
        a(f"s_cmp_lt_u32 s{sT3}, 2")
        a(f"s_cselect_b32 s{sW3F}, 1, 0")
        a(f"s_lshl_b32 s{sT4}, s{sT3}, 6")
        for j in range(3):
            a(f"v_add_u32 v5, s{sT4}, v{vLANE}")
            if j: a(f"v_add_u32 v5, {j*256}, v5")
            a("v_mul_u32_u24 v6, 6554, v5")
            a("v_lshrrev_b32 v6, 16, v6")
            a("v_mul_u32_u24 v7, 10, v6")
            a("v_sub_u32 v7, v5, v7")
            a(f"v_mul_u32_u24 v6, s{sSTRIDE}, v6")
            a(f"v_lshl_add_u32 v{vWS[j]}, v7, 4, v6")
        a(f"s_mul_i32 s{sWBEG}, s{sA}, {WA1}")
        a(f"s_lshl_b32 s{sT4}, s{sT3}, 10")
        a(f"s_add_u32 s{sWBEG}, s{sWBEG}, s{sT4}")
        a(f"s_add_u32 s{sWBEG}, s{sWBEG}, {WBASE}")
        a(f"s_mov_b32 s{sOOB}, {OOB}")
        a(f"s_mov_b32 s{sWDST}, s{sWBEG}")
        a(f"s_mov_b32 s{sXDST}, s{sXBEG}")
        a(f"v_and_b32 v5, 31, v{vLANE}")
        a(f"v_lshrrev_b32 v6, 5, v{vLANE}")
        a("v_lshrrev_b32 v7, 1, v5")
        a("v_and_b32 v7, 7, v7")
        a("v_xor_b32 v7, v7, v6")
        a("v_lshlrev_b32 v7, 4, v7")
        a("v_lshl_add_u32 v5, v5, 7, v7")
        a(f"v_add_u32 v5, s{sXBEG}, v5")
        for ks in range(4): a(f"v_xor_b32 v{vXA[ks]}, {ks<<5}, v5")
        a(f"v_lshrrev_b32 v5, 4, v{vLANE}")
        a("v_and_b32 v6, 1, v5")
        a(f"v_mul_u32_u24 v6, {WA1}, v6")
        a("v_lshrrev_b32 v5, 1, v5")
        a("v_lshlrev_b32 v5, 3, v5")
        a(f"v_bfe_u32 v7, v{vLANE}, 2, 2")
        a("v_add_u32 v5, v5, v7")
        a("v_mul_u32_u24 v5, 160, v5")
        a(f"v_and_b32 v7, 3, v{vLANE}")
        a("v_lshl_add_u32 v5, v7, 3, v5")
        a("v_add_u32 v5, v5, v6")
        a(f"v_add_u32 v{vWA}, {WBASE}, v5")
        a(f"v_and_b32 v5, 1, v{vLANE}")
        a("v_lshlrev_b32 v5, 4, v5")
        a("v_mov_b32 v6, 0x3f80")
        a("v_lshlrev_b32 v5, v5, v6")
        a(f"v_bfe_u32 v6, v{vLANE}, 1, 3")
        for d in range(4):
            a(f"v_cmp_eq_u32 vcc, {d}, v6")
            a(f"v_cndmask_b32 v{88+d}, 0, v5, vcc")
        a("v_mov_b32 v92, 0x3f803f80")
        a("v_mov_b32 v60, 0"); a("v_mov_b32 v61, 0"); a("v_mov_b32 v62, 0"); a("v_mov_b32 v63, 0")
        self.lane0_off(93)
        a(f"s_mov_b32 s{sMASK}, 0xffff0000")
        a(f"s_mov_b32 s{sWSTp}, {WST}"); a(f"s_mov_b32 s{sWSTm}, {(-2*WST) & 0xffffffff}")
        a(f"s_mov_b32 s{sXSTp}, {XST}"); a(f"s_mov_b32 s{sXSTm}, {(-2*XST) & 0xffffffff}")
        a(f"s_add_u32 s{sWEND}, s{sWBEG}, {3*WST}")
        a(f"s_add_u32 s{sXEND}, s{sXBEG}, {3*XST}")
        a(f"s_mov_b32 s{sRST}, 0")
        a(f"s_mov_b32 s{sC}, 0")
        a(f"s_mov_b32 s{sE}, 0")
        a(f"s_mov_b32 s{sSPEC}, { self.o['specmask'] if self.o.get('specmask') is not None else (0 if self.o.get('x_nospec') else (1<<0)|(1<<1)|(1<<2)|(1<<3)|(1<<4)|(1<<6)|(1<<7)|(1<<8)|(1<<9))}")
        a(f"s_mov_b32 s{sP2OK}, s{sT2}")
        a("s_waitcnt lgkmcnt(0)")
        if self.o.get("ts"): a("s_memrealtime s[26:27]")
        self.build_srd(sX, PX, 2621440)
        a(f"s_cmp_eq_u32 s{sA}, 0")
        a(f"s_cselect_b32 s{sW}, s{PWG}, s{PWU}")
        a(f"s_cselect_b32 s{sW+1}, s{PWG+1}, s{PWU+1}")
        a(f"s_cmp_eq_u32 s{sTYPE}, 2")
        a(f"s_cselect_b32 s{sW}, s{sW}, s{PQKV}")
        a(f"s_cselect_b32 s{sW+1}, s{sW+1}, s{PQKV+1}")
        a(f"s_mov_b32 s{sT3}, 2457600")
        a(f"s_cselect_b32 s{sW+2}, 1966080, s{sT3}")
        a(f"s_mov_b32 s{sW+3}, 0x00020000")
        for j in range(3): self.dma_w(j)
        for q in range(4): self.dma_x(q)
        if self.o.get("ts"): a(f"s_memrealtime s[{sRB2}:{sRB2+1}]")
        a(f"buffer_load_dwordx4 v[156:159], v8, {srd(sX)}, s{sP2OK} offen")
        a(f"buffer_load_dwordx4 v[160:163], v8, {srd(sX)}, s{sP2OK} offen offset:16")
        for c in range(2):
            if c == 1:
                for j in range(3): self.dma_w(j)
                for q in range(4): self.dma_x(q)
            a(f"s_add_u32 s{sWOFF}, s{sWOFF}, s{sWCH}")
            a(f"s_add_u32 s{sXOFF}, s{sXOFF}, 128")
            a(f"s_add_u32 s{sWDST}, s{sWDST}, {WST}")
            a(f"s_add_u32 s{sXDST}, s{sXDST}, {XST}")
        if self.o.get("cpf"):
            a(f"s_cmp_eq_u32 s{sWAVE}, 7")
            a("s_cbranch_scc0 L_nocpf")
            a(f"s_getpc_b64 s[{sTS}:{sTS+1}]")
            a(f"s_and_b32 s{sTS}, s{sTS}, 0xffffff00")
            a(f"v_lshlrev_b32 v2, 7, v{vLANE}")
            for k in range(5):
                a(f"global_load_dword v124, v2, s[{sTS}:{sTS+1}]")
                a("v_add_u32 v2, 8192, v2")
            a.label("L_nocpf")
        self.build_srd(sWS, PWS, WS_SIZE + (DBG_SIZE if self.o.get("dev") else 0))
        self.build_srd(sDBG, PDBG, 256)
        self.ts(0)
        self.ts(10, entry=True)
        self.ts(14, src=26)
        self.ts(15, src=sRB2)
        nts = self.nts([0, 10, 14, 15])
        a(f"v_lshlrev_b32 v{vTCH}, 7, v{vLANE}")
        a(f"s_mov_b32 s{sTCH}, s{PWD}"); a(f"s_mov_b32 s{sTCH+1}, s{PWD+1}"); a(f"s_mov_b32 s{sTCH+2}, 1966080"); a(f"s_mov_b32 s{sTCH+3}, 0x00020000")
        a(f"s_lshr_b32 s{sT3}, s2, 3")
        a(f"s_mul_i32 s{sT2}, s{sT3}, {480*128}")
        a(f"s_mul_i32 s{sT4}, s{sT3}, {200*128}")
        a(f"s_mov_b32 s{sTCO}, s{sOOB}"); a(f"s_mov_b32 s{sTCS}, 0")
        a(f"s_cmp_eq_u32 s{sWAVE}, 2")
        a(f"s_cselect_b32 s{sTCS}, 8192, s{sTCS}"); a(f"s_cselect_b32 s{sTCO}, s{sT2}, s{sTCO}")
        a(f"s_add_u32 s{sT2}, s{sT2}, {240*128}")
        a(f"s_cmp_eq_u32 s{sWAVE}, 3")
        a(f"s_cselect_b32 s{sTCS}, 8192, s{sTCS}"); a(f"s_cselect_b32 s{sTCO}, s{sT2}, s{sTCO}")
        a(f"s_cmp_eq_u32 s{sWAVE}, 6")
        a(f"s_cselect_b32 s{sTCS}, 8192, s{sTCS}"); a(f"s_cselect_b32 s{sTCO}, s{sT4}, s{sTCO}")
        a(f"s_cselect_b32 s{sTCH}, s{PWO}, s{sTCH}"); a(f"s_cselect_b32 s{sTCH+1}, s{PWO+1}, s{sTCH+1}"); a(f"s_cselect_b32 s{sTCH+2}, 819200, s{sTCH+2}")
        self.build_srd(sT0, PPHI, 25600)
        nz = 0
        a(f"s_cmp_eq_u32 s{sTYPE}, 0")
        a("s_cbranch_scc0 L_nozkv")
        a(f"s_cmp_eq_u32 s{sRB}, 0")
        a("s_cbranch_scc0 L_nozkv")
        a(f"s_lshl_b32 s{sT2}, s{sJOB}, 14")
        a(f"s_lshl_b32 s{sT3}, s{sWAVE}, 11")
        a(f"s_add_u32 s{sT2}, s{sT2}, s{sT3}")
        a(f"s_add_u32 s{sT2}, s{sT2}, {KV_OFF}")
        a(f"v_lshlrev_b32 v7, 4, v{vLANE}")
        a(f"buffer_store_dwordx4 v[60:63], v7, {srd(sWS)}, s{sT2} offen sc1")
        a(f"buffer_store_dwordx4 v[60:63], v7, {srd(sWS)}, s{sT2} offen offset:1024 sc1")
        a(f"s_lshl_b32 s{sT2}, s{sJOB}, 8")
        a(f"s_add_u32 s{sT2}, s{sT2}, {CNT_OFF + 16*256}")
        a(f"buffer_store_dword v60, v93, {srd(sWS)}, s{sT2} offen sc1")
        a("s_branch L_zdone")
        a.label("L_nozkv")
        a(f"s_cmp_eq_u32 s{sJIDX}, 3")
        a("s_cbranch_scc0 L_zdone")
        a(f"s_lshl_b32 s{sT2}, s{sRB}, 8")
        a(f"s_add_u32 s{sT2}, s{sT2}, {CNT_OFF}")
        a(f"buffer_store_dword v60, v93, {srd(sWS)}, s{sT2} offen sc1")
        a(f"s_add_u32 s{sT2}, s{sT2}, {8*256}")
        a(f"buffer_store_dword v60, v93, {srd(sWS)}, s{sT2} offen sc1")
        a.label("L_zdone")
        a(f"s_cmp_eq_u32 s{sWAVE}, 0")
        a("s_cbranch_scc0 L_nozl")
        a(f"v_mov_b32 v7, {L_ZERO}")
        a("ds_write_b128 v7, v[60:63]")
        a("v_mov_b32 v4, 0x3f80"); a("v_mov_b32 v5, 0")
        a("ds_write_b64 v7, v[4:5] offset:16")
        a.label("L_nozl")
        for t in range(5):
            a(f"v_mov_b32 v{AP+4*t+2}, 0"); a(f"v_mov_b32 v{AP+4*t+3}, 0")
        a(f"s_mov_b32 s{sA}, s{sP2OK}")
        self.p2_setup()
        if self.o.get("prots"):
            a("s_memrealtime s[98:99]")
        a(f"s_waitcnt vmcnt(7)")
        if self.o.get("prots"):
            a("s_waitcnt lgkmcnt(0)")
            a("s_mov_b32 s27, s98")
            self.ts(13, src=27)
            self.ts(12)
        a("v_mov_b32 v2, 0"); a("v_mov_b32 v4, 0")
        for i in range(8):
            a(f"v_dot2c_f32_bf16 v2, v{156+i}, v92")
            a(f"v_dot2c_f32_bf16 v4, v{156+i}, v{156+i}")
        for r in (8, 4, 2, 1):
            a(f"v_add_f32_dpp v2, v2, v2 row_ror:{r} row_mask:0xf bank_mask:0xf")
            a(f"v_add_f32_dpp v4, v4, v4 row_ror:{r} row_mask:0xf bank_mask:0xf")
        a("v_mov_b32 v3, v2"); a("v_mov_b32 v5, v4")
        a("v_permlane16_swap_b32 v2, v3"); a("v_permlane16_swap_b32 v4, v5")
        a("v_add_f32 v2, v2, v3"); a("v_add_f32 v4, v4, v5")
        a("v_mov_b32 v3, v2"); a("v_mov_b32 v5, v4")
        a("v_permlane32_swap_b32 v2, v3"); a("v_permlane32_swap_b32 v4, v5")
        a("v_add_f32 v2, v2, v3"); a("v_add_f32 v5, v4, v5")
        a(f"v_mul_f32 v4, {f2u(1.0/640):#x}, v2")
        a(f"v_mul_f32 v5, {f2u(1.0/640):#x}, v5")
        a("v_fma_f32 v5, -v4, v4, v5")
        a("v_max_f32 v5, 0, v5")
        a(f"v_add_f32 v5, {f2u(1e-5):#x}, v5")
        a(f"s_lshl_b32 s{sT2}, s{sD}, 3")
        a(f"s_add_u32 s{sT2}, s{sT2}, {ST_OFF}")
        a(f"buffer_store_dwordx2 v[4:5], v93, {srd(sWS)}, s{sT2} offen sc1")
        if self.o.get("prots"): self.ts(6)
        a("s_waitcnt lgkmcnt(0)")
        a("s_barrier")
        self.ts(1)
        if self.o.get("cyc"):
            a("s_memtime s[26:27]")
            self.ts(13, src=26)

    def cs_mfma(self, a):
        for i in range(5):
            c = "0" if i == 0 else "v[84:87]"
            a(f"v_mfma_f32_16x16x32_bf16 v[84:87], v[88:91], v[{64+4*i}:{67+4*i}], {c}")
        a(f"v_and_b32 v6, 15, v{vLANE}")
        a(f"v_lshrrev_b32 v7, 4, v{vLANE}")
        a("v_lshlrev_b32 v5, 5, v6")
        a("v_lshl_add_u32 v5, v7, 4, v5")
        a(f"s_mul_i32 s{sT2}, s{sWAVE}, 320")
        a(f"s_add_u32 s{sT2}, s{sT2}, {L_CSP}")
        a(f"v_add_u32 v5, s{sT2}, v5")
        a(f"v_mov_b32 v3, {L_DUMMY}")
        a("v_cmp_gt_u32 vcc, 10, v6")
        a("s_nop 1")
        a("v_cndmask_b32 v5, v3, v5, vcc")
        a("v_cmp_gt_u32 vcc, 2, v7")
        a("s_nop 1")
        a("v_cndmask_b32 v5, v3, v5, vcc")
        a("s_nop 4")
        a("ds_write_b128 v5, v[84:87]")

    def cs_cross(self, a):
        a(f"v_cmp_le_u32 vcc, 10, v{vLANE}")
        a(f"v_subrev_u32 v7, 10, v{vLANE}")
        a("s_nop 0")
        a(f"v_cndmask_b32 v7, v{vLANE}, v7, vcc")
        a("v_cndmask_b32 v8, 0, 1, vcc")
        a("v_mul_u32_u24 v5, 1280, v8")
        a("v_lshl_add_u32 v5, v7, 5, v5")
        a(f"v_add_u32 v5, {L_CSP}, v5")
        a(f"v_mov_b32 v6, {L_ZERO}")
        a(f"v_cmp_gt_u32 vcc, 20, v{vLANE}")
        a("s_nop 1")
        a("v_cndmask_b32 v5, v6, v5, vcc")
        for k in range(4):
            a(f"ds_read_b128 v[{64+8*k}:{67+8*k}], v5 offset:{k*320}")
            a(f"ds_read_b128 v[{68+8*k}:{71+8*k}], v5 offset:{k*320+16}")
        a("v_lshrrev_b32 v5, 1, v7")
        a("v_lshlrev_b32 v5, 5, v5")
        a("v_lshl_add_u32 v5, v8, 4, v5")
        a("v_and_b32 v6, 1, v7")
        a("v_lshl_add_u32 v5, v6, 3, v5")
        a("v_lshlrev_b32 v5, 2, v5")
        a(f"v_mov_b32 v6, {OOB}")
        a("v_cndmask_b32 v5, v6, v5, vcc")
        a(f"s_lshl_b32 s{sT2}, s{sJIDX}, 3")
        a(f"s_add_u32 s{sT2}, s{sT2}, s{sRB}")
        a(f"s_mul_i32 s{sT2}, s{sT2}, 640")
        a(f"s_add_u32 s{sT2}, s{sT2}, {CSP_OFF}")
        a("s_waitcnt lgkmcnt(0)")
        for e in range(8):
            a(f"v_add_f32 v{64+e}, v{64+e}, v{72+e}")
            a(f"v_add_f32 v{80+e}, v{80+e}, v{88+e}")
            a(f"v_add_f32 v{64+e}, v{64+e}, v{80+e}")
        a(f"buffer_store_dwordx4 v[64:67], v5, {srd(sWS)}, s{sT2} offen sc1")
        a(f"buffer_store_dwordx4 v[68:71], v5, {srd(sWS)}, s{sT2} offen offset:16 sc1")

    def touch_issue(self):
        a = self.a
        a(f"s_sub_u32 s{sT2}, s{sC}, s{sTCB}")
        a(f"s_cmp_lt_u32 s{sT2}, s{sTCN}")
        a(f"s_cselect_b32 s{sT3}, s{sTCO}, s{sOOB}")
        a(f"s_cselect_b32 s{sT4}, s{sTCS}, 0")
        a(f"buffer_load_dword v{vTCD}, v{vTCH}, {srd(sTCH)}, s{sT3} offen")
        a(f"s_add_u32 s{sTCO}, s{sTCO}, s{sT4}")

    def dma_w(self, j):
        a = self.a
        if j < 2:
            a(f"s_add_u32 m0, s{sWDST}, {j*4096}")
            a("s_nop 0")
            a(f"buffer_load_dwordx4 v{vWS[j]}, {srd(sW)}, s{sWOFF} offen lds")
        else:
            a(f"s_add_u32 s{sT4}, s{sWDST}, 8192")
            a(f"s_cmp_lg_u32 s{sW3F}, 0")
            a(f"s_cselect_b32 m0, s{sT4}, {L_DUMMY}")
            a(f"s_cselect_b32 s{sT3}, s{sWOFF}, s{sOOB}")
            a(f"buffer_load_dwordx4 v{vWS[j]}, {srd(sW)}, s{sT3} offen lds")

    def dma_x(self, q):
        a = self.a
        a(f"s_add_u32 m0, s{sXDST}, {q*1024}")
        a(f"s_add_u32 s{sT5}, s{sXOFF}, {q*8*1280}")
        a(f"buffer_load_dwordx4 v{vXS[q&1]}, {srd(sX)}, s{sT5} offen lds")

    def wphi_gather(self, which, a=None):
        a = a or self.a
        a(f"s_lshr_b32 s{sT2}, s{sWAVE}, 1")
        a(f"s_and_b32 s{sT3}, s{sWAVE}, 1")
        a(f"s_lshl_b32 s{sT4}, s{sJOB}, 2")
        a(f"s_lshl_b32 s{sT5}, s{sJOB}, 3")
        a(f"s_cmp_eq_u32 s{sTYPE}, 0")
        a(f"s_cselect_b32 s{sT4}, s{sT4}, s{sT5}")
        a(f"s_add_u32 s{sT4}, s{sT4}, s{sT2}")
        if which: a(f"s_add_u32 s{sT4}, s{sT4}, 4")
        a(f"s_mul_i32 s{sT4}, s{sT4}, 800")
        a(f"s_and_b32 s{sT5}, s{sT2}, 1")
        a(f"s_lshl_b32 s{sT3}, s{sT3}, 2")
        a(f"s_sub_u32 s{sT3}, s{sT3}, s{sT5}")
        a(f"v_bfe_u32 v2, v{vLANE}, 3, 2")
        a(f"v_and_b32 v3, 3, v{vLANE}")
        a("v_lshl_add_u32 v2, v2, 2, v3")
        a(f"v_bfe_u32 v3, v{vLANE}, 2, 1")
        a("v_mul_u32_u24 v3, 10, v3")
        a("v_add_u32 v3, v3, v2")
        a(f"v_lshrrev_b32 v4, 5, v{vLANE}")
        a(f"v_add_u32 v4, s{sT3}, v4")
        for jh in range(2):
            if jh: a("v_add_u32 v4, 2, v4")
            a("v_mul_u32_u24 v5, 160, v4")
            a("v_lshl_add_u32 v5, v3, 1, v5")
            a("v_cmp_gt_u32 vcc, 5, v4")
            a(f"v_mov_b32 v6, {OOB}")
            a("v_cndmask_b32 v5, v6, v5, vcc")
            a("v_cmp_gt_u32 vcc, 10, v2")
            a("v_cndmask_b32 v5, v6, v5, vcc")
            for e in range(4):
                d = WRAW + 8 * which + 4 * jh + e
                a(f"buffer_load_ushort v{d}, v5, {srd(sT0)}, s{sT4} offen offset:{e*40}")

    def p2_setup(self):
        a = self.a
        a(f"s_lshr_b32 s{sT2}, s2, 3")
        a(f"s_sub_u32 s{sT3}, s{sT2}, 12")
        a(f"s_cmp_eq_u32 s{sTYPE}, 2")
        a(f"s_cselect_b32 s{sP2OK}, 1, 0")
        a(f"s_cselect_b32 s{sT3}, s{sT3}, 0")
        a(f"s_mul_i32 s{sT4}, s{sXCD}, 20")
        a(f"s_add_u32 s{sT4}, s{sT4}, s{sT3}")
        a(f"s_mul_i32 s{sRB2}, s{sT4}, 6554")
        a(f"s_lshr_b32 s{sRB2}, s{sRB2}, 16")
        a(f"s_mul_i32 s{sT2}, s{sRB2}, 10")
        a(f"s_sub_u32 s{sCB}, s{sT4}, s{sT2}")
        a(f"v_lshrrev_b32 v2, 3, v{vLANE}")
        a(f"v_and_b32 v3, 7, v{vLANE}")
        a("v_bfe_u32 v4, v2, 1, 1")
        a("v_lshlrev_b32 v4, 2, v4")
        a("v_xor_b32 v3, v3, v4")
        a("v_lshlrev_b32 v3, 4, v3")
        a("v_lshrrev_b32 v4, 2, v2")
        a("v_lshlrev_b32 v4, 3, v4")
        a("v_and_b32 v5, 3, v2")
        a("v_add_u32 v4, v4, v5")
        a("v_mul_u32_u24 v4, 1280, v4")
        a(f"v_add_u32 v{vP2}, v4, v3")
        a(f"v_add_u32 v{vP2+1}, {4*1280}, v{vP2}")
        a("v_mul_u32_u24 v4, 2560, v2")
        a(f"v_add_u32 v{vP2+2}, v4, v3")
        a(f"v_add_u32 v{vP2+3}, 1280, v{vP2+2}")
        a(f"s_and_b32 s{sT2}, s{sWAVE}, 1")
        a(f"s_cmp_eq_u32 s{sT2}, 0")
        a("s_cselect_b64 vcc, -1, 0")
        a(f"v_cndmask_b32 v99, v{vP2+1}, v{vP2}, vcc")

    def p2_pref_begin(self):
        a = self.a
        self.build_srd(sT0, PWD, 1966080)
        self.build_srd(sT1, PWO, 819200)
        a(f"s_lshr_b32 s{sA}, s{sWAVE}, 1")
        a(f"s_and_b32 s{sE}, s{sWAVE}, 1")
        a(f"s_mul_i32 s{sTMP}, s{sA}, 40960")
        a(f"s_mul_i32 s{sA}, s{sA}, 24")
        a(f"s_mul_i32 s{sE}, s{sE}, 10")
        a(f"s_add_u32 s{sA}, s{sA}, s{sE}")
        a(f"s_mul_i32 s{sA}, s{sA}, {16*1280}")
        a(f"s_lshl_b32 s{sE}, s{sE}, 11")
        a(f"s_add_u32 s{sE}, s{sE}, s{sTMP}")
        a(f"s_lshl_b32 s{sTMP}, s{sCB}, 7")
        a(f"s_add_u32 s{sA}, s{sA}, s{sTMP}")
    def p2_pref(self, i):
        a = self.a
        n, hh = i >> 1, i & 1
        a(f"s_add_u32 m0, s{sE}, {n * 2048 + hh * 1024}")
        a(f"s_add_u32 s{sTMP}, s{sA}, {n * 16 * 1280}")
        a(f"buffer_load_dwordx4 v{vP2+hh}, {srd(sT0)}, s{sTMP} offen lds")

    def rd_x(self, ks):
        r = XF[ks & 1]
        self.a(f"ds_read_b128 v[{r}:{r+3}], v{vXA[ks]}")
    def rd_w(self, ks, t):
        r = WF + 4 * t
        self.a(f"ds_read_b64_tr_b16 v[{r}:{r+1}], v{vWA} offset:{ks*2560 + t*32}")
        self.a(f"ds_read_b64_tr_b16 v[{r+2}:{r+3}], v{vWA} offset:{ks*2560 + 640 + t*32}")

    def mainloop(self):
        a = self.a
        vm = []
        def V(tag): vm.append(tag)
        def wait_n(tags):
            last = max(i for i, t in enumerate(vm) if t in tags)
            return len(vm) - 1 - last
        def rdw(c, ks, t):
            r = WF + 4 * t
            o = (c % 3) * WST + ks * 2560 + t * 32
            a(f"ds_read_b64_tr_b16 v[{r}:{r+1}], v{vWA} offset:{o}")
            a(f"ds_read_b64_tr_b16 v[{r+2}:{r+3}], v{vWA} offset:{o + 640}")
        def dw(c, j):
            st = (c % 3) * WST
            if j < 2:
                a(f"s_add_u32 m0, s{sWBEG}, {st + j*4096}")
                a("s_nop 0")
                a(f"buffer_load_dwordx4 v{vWS[j]}, {srd(sW)}, s{sWOFF} offen lds")
            else:
                a(f"s_add_u32 s{sDW}, s{sWBEG}, {st + 8192}")
                a(f"s_cmp_lg_u32 s{sW3F}, 0")
                a(f"s_cselect_b32 m0, s{sDW}, {L_DUMMY}")
                a(f"s_cselect_b32 s{sDX}, s{sWOFF}, s{sOOB}")
                a(f"buffer_load_dwordx4 v{vWS[j]}, {srd(sW)}, s{sDX} offen lds")
                a(f"s_add_u32 s{sWOFF}, s{sWOFF}, s{sWCH}")
            V(f"D{c}")
        def dx(c, q):
            a(f"s_add_u32 m0, s{sXBEG}, {(c % 3) * XST + q*1024}")
            a(f"s_add_u32 s{sRST}, s{sXOFF}, {(c - 2) * 128 + q*8*1280}")
            a(f"buffer_load_dwordx4 v{vXS[q&1]}, {srd(sX)}, s{sRST} offen lds")
            V(f"D{c}")
        for _ in range(7): V("D0")
        V("st"); V("st")
        for _ in range(7): V("D1")
        V("ss")
        self.rd_x(0)
        for t in range(5): rdw(0, 0, t)
        for j in range(3): dw(2, j)
        for q in range(4): dx(2, q)
        for i in range(5):
            a(f"buffer_load_dwordx4 v[{64+4*i}:{67+4*i}], v15, {srd(sW)}, s{sKH} offen")
            if i < 4: a(f"s_add_u32 s{sKH}, s{sKH}, s{sTT}")
            V("CS")
        fill = []
        class _C(Asm): pass
        def units_from(fn, per=1):
            t = _C(); fn(t)
            out, cur = [], []
            for ln in t.l:
                cur.append(ln)
                op = ln.split()[0]
                opens = op.startswith("s_cmp") or op.startswith("v_cmp") or op.startswith("s_add_u32 m0") or op in ("s_nop",)
                if not opens:
                    out.append(cur); cur = []
            if cur: out.append(cur)
            return out
        def drain(n):
            k = 0
            while fill and k < n:
                u = fill.pop(0)
                for ln in u:
                    if isinstance(ln, tuple): V(ln[1])
                    else: a(ln)
                k += max(1, sum(1 for x in u if not isinstance(x, tuple)))
        def vm_unit(instr, tag): return [instr, ("V", tag)]
        def f_phi():
            u = []
            for which in range(2):
                t = _C(); self.wphi_gather(which, t)
                loads = [l for l in t.l if l.startswith("buffer_load")]
                cur = []
                pre = []
                for ln in t.l:
                    if ln.startswith("buffer_load"):
                        cur.append(ln)
                        if len(cur) == 4:
                            lab = a.uniq("L_phisk")
                            cond = [f"s_cmp_eq_u32 s{sTYPE}, 2", f"s_cbranch_scc1 {lab}"] if which == 0 else [f"s_cmp_lg_u32 s{sTYPE}, 1", f"s_cbranch_scc1 {lab}"]
                            u.append(cond + cur + [lab + ":"]); cur = []
                    else:
                        pre.append(ln)
                        op = ln.split()[0]
                        if not (op.startswith("s_cmp") or op.startswith("v_cmp")):
                            u.append(pre); pre = []
            return u
        def blk_wave0(fn):
            lab = a.uniq("L_w0")
            t = _C(); fn(t)
            return [[f"s_cmp_eq_u32 s{sWAVE}, 0", f"s_cbranch_scc0 {lab}"] + t.l + [lab + ":"]]
        def arrival(o):
            o(f"v_mov_b32 v2, 1")
            self.lane0_off(3, o)
            o(f"s_lshr_b32 s{sT2}, s{sRB}, 1")
            o(f"s_lshl_b32 s{sT2}, s{sT2}, 6")
            o(f"s_and_b32 s{sT3}, s{sRB}, 1")
            o(f"s_lshl_b32 s{sT3}, s{sT3}, 2")
            o(f"s_add_u32 s{sT2}, s{sT2}, s{sT3}")
            o(f"buffer_atomic_add v2, v3, {srd(sDBG)}, s{sT2} offen")
        def f_stats_loads():
            u = units_from(lambda o: (
                o(f"v_and_b32 v2, 31, v{vLANE}"), o("v_lshlrev_b32 v3, 3, v2"),
                o(f"s_lshl_b32 s{sT2}, s{sRB}, 8"), o(f"s_lshl_b32 s{sTMP}, s{sWAVE}, 5"), o(f"s_add_u32 s{sT2}, s{sT2}, s{sTMP}"),
                o(f"s_lshl_b32 s{sT2}, s{sT2}, 3"), o(f"s_add_u32 s{sT2}, s{sT2}, {ST_OFF}")))
            u.append(vm_unit(f"buffer_load_dwordx2 v[{vSTAT}:{vSTAT+1}], v3, {srd(sWS)}, s{sT2} offen sc1", "SL"))
            u += units_from(lambda o: (
                o("v_lshlrev_b32 v3, 2, v2"), o(f"s_mul_i32 s{sT2}, s{sJIDX}, {8*640}"), o(f"s_min_u32 s{sTMP}, s{sWAVE}, 4"),
                o(f"s_lshl_b32 s{sTMP}, s{sTMP}, 7"), o(f"s_add_u32 s{sT2}, s{sT2}, s{sTMP}"), o(f"s_add_u32 s{sT2}, s{sT2}, {CSP_OFF}")))
            for r in range(8):
                if r * 640 < 4096: u.append(vm_unit(f"buffer_load_dword v{CSL+r}, v3, {srd(sWS)}, s{sT2} offen offset:{r*640} sc1", "SL"))
                else:
                    u.append([f"s_add_u32 s{sTMP}, s{sT2}, {r*640}"] + vm_unit(f"buffer_load_dword v{CSL+r}, v3, {srd(sWS)}, s{sTMP} offen sc1", "SL"))
            return u
        def build(o):
            o(f"v_rsq_f32 v{vRSTD}, v{vSTAT+1}")
            o(f"v_sub_f32 v2, 0, v{vSTAT}")
            o(f"v_cvt_pk_bf16_f32 v{BP}, v2, v2")
            o(f"v_and_b32 v3, s{sMASK}, v{BP}")
            o("v_sub_f32 v3, v2, v3")
            o(f"v_cvt_pk_bf16_f32 v{BP+1}, v3, 0")
            o(f"v_mov_b32 v{BP+2}, 0"); o(f"v_mov_b32 v{BP+3}, 0")
            for r in (0, 2, 4, 6): o(f"v_add_f32 v{CSL+r}, v{CSL+r}, v{CSL+r+1}")
            o(f"v_add_f32 v{CSL}, v{CSL}, v{CSL+2}"); o(f"v_add_f32 v{CSL+4}, v{CSL+4}, v{CSL+6}")
            o(f"v_add_f32 v{CSL}, v{CSL}, v{CSL+4}")
            o(f"v_cvt_pk_bf16_f32 v5, v{CSL}, 0")
            o("v_lshlrev_b32 v2, 16, v5")
            o(f"v_sub_f32 v2, v{CSL}, v2")
            o(f"v_cvt_pk_bf16_f32 v4, v{CSL}, v2")
            o(f"v_lshlrev_b32 v6, 3, v{vLANE}")
            o(f"s_lshl_b32 s{sT2}, s{sWAVE}, 8")
            o(f"s_add_u32 s{sT2}, s{sT2}, {L_CSP}")
            o(f"v_add_u32 v6, s{sT2}, v6")
            o(f"v_mov_b32 v7, {L_DUMMY}")
            o(f"v_cmp_gt_u32 vcc, 32, v{vLANE}")
            o("v_cndmask_b32 v6, v7, v6, vcc")
            o(f"s_cmp_ge_u32 s{sWAVE}, 5")
            o("s_cselect_b64 vcc, -1, 0")
            o("v_cndmask_b32 v6, v6, v7, vcc")
            o("ds_write_b64 v6, v[4:5]")
            for i in range(8): o(f"v_lshl_or_b32 v{WPHI+i}, v{WRAW+2*i+1}, 16, v{WRAW+2*i}")
            o(f"v_lshlrev_b32 v6, 4, v{vLANE}")
            o(f"s_lshl_b32 s{sT2}, s{sWAVE}, 10")
            o(f"s_add_u32 s{sT2}, s{sT2}, {L_WPHI}")
            o(f"v_add_u32 v6, s{sT2}, v6")
            o(f"ds_write_b128 v6, v[{WPHI}:{WPHI+3}]")
            o(f"ds_write_b128 v6, v[{WPHI+4}:{WPHI+7}] offset:8192")
        def areads(o):
            o(f"v_lshlrev_b32 v6, 3, v{vLANE}")
            o(f"v_add_u32 v6, {L_CSP}, v6")
            o(f"v_mov_b32 v7, {L_ZERO}")
            o(f"v_cmp_gt_u32 vcc, 32, v{vLANE}")
            o("v_cndmask_b32 v8, v7, v6, vcc")
            o("v_mov_b32 v9, 256")
            o("v_cndmask_b32 v9, 0, v9, vcc")
            for t in range(5):
                o(f"ds_read_b64 v[{AP+4*t}:{AP+4*t+1}], v8")
                if t < 4: o("v_add_u32 v8, v8, v9")
        def check(o):
            lab = a.uniq("L_spin"); done = a.uniq("L_spind")
            o("s_waitcnt vmcnt(5)")
            o(f"s_mov_b32 s{sT2}, 0")
            o.label(lab)
            o(f"v_and_b32 v2, v{vPOLL}, v{vPOLL+1}")
            for i in range(2, 8): o(f"v_and_b32 v2, v2, v{vPOLL+i}")
            o("v_and_b32 v2, 32, v2")
            o("s_nop 1")
            o(f"v_readfirstlane_b32 s{sT3}, v2")
            o("s_nop 3")
            o(f"s_cmp_eq_u32 s{sT3}, 32")
            o(f"s_cbranch_scc1 {done}")
            o(f"s_add_u32 s{sT2}, s{sT2}, 1")
            o(f"s_cmp_gt_u32 s{sT2}, 200000")
            o(f"s_cbranch_scc1 {done}")
            o("s_sleep 2")
            self.poll_loads(o)
            o("s_waitcnt vmcnt(0)")
            o(f"s_branch {lab}")
            o.label(done)
        post = {
            0: lambda: f_phi(),
            1: lambda: units_from(self.cs_mfma),
            2: lambda: blk_wave0(self.cs_cross),
            3: lambda: units_from(self.epi_addrs),
            4: lambda: blk_wave0(arrival),
            6: lambda: blk_wave0(self.poll_loads),
            7: lambda: f_stats_loads(),
            8: lambda: units_from(build),
            9: lambda: units_from(areads),
        }
        need_extra = {1: ["CS"], 8: ["SL"]}
        sched = {(3, 0): ("w", 0), (3, 1): ("x", 0), (3, 2): ("w", 1), (3, 4): ("x", 1), (0, 0): ("w", 2), (0, 2): ("x", 2), (0, 4): ("x", 3)}
        xdelta_pending = None
        for c in range(10):
            for ks in range(4):
                xf = XF[ks & 1]
                if ks == 3:
                    while fill: drain(8)
                    tags = ([f"D{c+1}"] if c < 9 else []) + need_extra.get(c, [])
                    n = wait_n(tags) if tags else 63
                    if c == 7:
                        a(f"s_waitcnt vmcnt({min(n, 63)}) lgkmcnt(0)")
                        for ln in blk_wave0(check)[0]: a(ln)
                    else:
                        a(f"s_waitcnt vmcnt({min(n, 63)}) lgkmcnt(0)")
                    a("s_barrier")
                    if c < 9:
                        d = XST if (c % 3) != 2 else (-2 * XST) & 0xffffffff
                        a(f"v_add_u32 v{vXA[0]}, {d:#x}, v{vXA[0]}")
                        fill += [[f"v_add_u32 v{vXA[k]}, {d:#x}, v{vXA[k]}"] for k in (1, 2, 3)]
                    if c in post: fill += post[c]()
                for t in range(5):
                    first = (c == 0 and ks == 0)
                    lastk = (c == 9 and ks == 3)
                    a(f"s_waitcnt lgkmcnt({2 * (4 - t) if lastk else (8 if t == 0 else 9)})")
                    cin = "0" if first else f"v[{ACC+16*t}:{ACC+16*t+15}]"
                    a(f"v_mfma_f32_32x32x16_bf16 v[{ACC+16*t}:{ACC+16*t+15}], v[{WF+4*t}:{WF+4*t+3}], v[{xf}:{xf+3}], {cin}")
                    nc, nks = (c, ks + 1) if ks < 3 else (c + 1, 0)
                    if nc < 10:
                        if t == 0: self.rd_x(nks)
                        rdw(nc, nks, t)
                    if (ks, t) in sched:
                        kind, q = sched[(ks, t)]
                        lc = c + 3 if ks == 3 else c + 2
                        if 3 <= lc <= 9:
                            if kind == "w": dw(lc, q)
                            else: dx(lc, q)
                    if ks == 2 and t == 3 and 4 <= c <= 7 and not self.o.get("nowarm"):
                        a(f"buffer_load_dword v{vTCD}, v{vTCH}, {srd(sTCH)}, s{sTCO} offen")
                        a(f"s_add_u32 s{sTCO}, s{sTCO}, s{sTCS}")
                        V("T")
                    drain(3)
        while fill: drain(8)

    def epi_addrs(self, a):
        a(f"v_lshlrev_b32 v{vL16g}, 4, v{vLANE}")
        a(f"v_add_u32 v{vWPH}, {L_WPHI}, v{vL16g}")
        a(f"v_and_b32 v5, 31, v{vLANE}")
        a(f"s_lshl_b32 s{sT2}, s{sWAVE}, 5")
        a(f"v_add_u32 v5, s{sT2}, v5")
        a(f"v_lshrrev_b32 v6, 5, v{vLANE}")
        a(f"v_mul_u32_u24 v{vPHW}, {PHI_ROW}, v5")
        a("v_mul_u32_u24 v7, 40, v6")
        a(f"v_add_u32 v{vPHW}, v{vPHW}, v7")
        a(f"v_mul_u32_u24 v{vVW}, {V_ROW}, v5")
        a(f"v_lshl_add_u32 v{vVW}, v6, 3, v{vVW}")
        a(f"v_add_u32 v{vVW}, {L_V}, v{vVW}")
        a(f"s_lshr_b32 s{sWSTp}, s{sWAVE}, 1")
        a(f"s_and_b32 s{sWSTm}, s{sWAVE}, 1")
        a(f"v_lshrrev_b32 v5, 4, v{vLANE}")
        a("v_and_b32 v6, 1, v5")
        a("v_lshrrev_b32 v5, 1, v5")
        a(f"v_bfe_u32 v7, v{vLANE}, 2, 2")
        a("v_lshl_add_u32 v5, v5, 3, v7")
        a(f"v_and_b32 v7, 3, v{vLANE}")
        a(f"s_mul_i32 s{sT4}, s{sWSTp}, 40")
        a("v_lshlrev_b32 v8, 3, v7")
        a(f"v_add_u32 v8, s{sT4}, v8")
        a(f"s_add_u32 s{sT5}, s{sT4}, 32")
        a(f"v_mov_b32 v9, s{sT5}")
        a("v_cmp_eq_u32 vcc, 0, v6")
        a("v_cndmask_b32 v8, v9, v8, vcc")
        a(f"v_mul_u32_u24 v9, {V_ROW}, v5")
        a("v_add_u32 v8, v8, v9")
        a(f"v_add_u32 v{vKA}, {L_V}, v8")
        a("v_cmp_ne_u32 vcc, 0, v7")
        a("v_cndmask_b32 v2, 0, v6, vcc")
        a("v_cmp_eq_u32 vcc, 0, v2")
        a(f"v_mov_b32 v3, {L_ONES}")
        a(f"v_cndmask_b32 v{vKA}, v3, v{vKA}, vcc")
        a(f"v_mov_b32 v3, {4*V_ROW}")
        a(f"v_cndmask_b32 v{vKS}, 0, v3, vcc")
        a(f"s_lshl_b32 s{sT5}, s{sWSTm}, 3")
        a("v_lshl_add_u32 v8, v6, 2, v7")
        a(f"v_add_u32 v8, s{sT5}, v8")
        a("v_min_u32 v8, 9, v8")
        a("v_lshlrev_b32 v8, 3, v8")
        a(f"s_mul_i32 s{sT4}, s{sWSTp}, 80")
        a(f"v_add_u32 v8, s{sT4}, v8")
        a(f"v_mul_u32_u24 v9, {PHI_ROW}, v5")
        a(f"v_add_u32 v{vKB0}, v8, v9")
        a(f"v_add_u32 v{vKB1}, {8*16*PHI_ROW}, v{vKB0}")
        a(f"v_and_b32 v5, 31, v{vLANE}")
        a(f"s_lshl_b32 s{sT5}, s{sWSTm}, 5")
        a(f"v_add_u32 v5, s{sT5}, v5")
        a(f"v_lshrrev_b32 v6, 5, v{vLANE}")
        a("v_mul_u32_u24 v7, 160, v6")
        a("v_add_u32 v7, v7, v5")
        a("v_lshlrev_b32 v7, 2, v7")
        a(f"v_mov_b32 v8, {OOB}")
        a("v_cmp_gt_u32 vcc, 40, v5")
        a(f"v_cndmask_b32 v{vAT0}, v8, v7, vcc")
        a("v_cmp_eq_u32 vcc, 0, v6")
        a(f"v_cndmask_b32 v{vAT1}, v8, v{vAT0}, vcc")
        a(f"s_lshl_b32 s{sT4}, s{sJOB}, 2")
        a(f"s_add_u32 s{sT4}, s{sT4}, s{sWSTp}")
        a(f"s_lshl_b32 s{sT4}, s{sT4}, 12")
        a(f"s_add_u32 s{sXSTp}, s{sT4}, {KV_OFF}")
        a(f"v_bfe_u32 v2, v{vLANE}, 3, 2")
        a(f"v_and_b32 v3, 3, v{vLANE}")
        a("v_lshl_add_u32 v2, v2, 2, v3")
        a(f"v_bfe_u32 v3, v{vLANE}, 2, 1")
        a("v_lshl_add_u32 v3, v2, 1, v3")
        a("v_mov_b32 v4, 20")
        a("v_cmp_eq_u32 vcc, 10, v2")
        a("v_cndmask_b32 v3, v3, v4, vcc")
        a("v_mul_u32_u24 v3, 160, v3")
        a(f"v_lshrrev_b32 v4, 5, v{vLANE}")
        a("v_mul_u32_u24 v4, 80, v4")
        a("v_add_u32 v3, v3, v4")
        a(f"v_mov_b32 v4, {OOB}")
        a("v_cmp_gt_u32 vcc, 11, v2")
        a(f"v_cndmask_b32 v{vQG}, v4, v3, vcc")

    def poll_loads(self, o):
        o("v_mov_b32 v2, 0")
        for k in range(4):
            o(f"buffer_load_dwordx2 v[{vPOLL+2*k}:{vPOLL+2*k+1}], v2, {srd(sDBG)}, 0 offen offset:{k*64} sc1")

    def mean_corr(self):
        a = self.a
        a("s_waitcnt lgkmcnt(0)")
        for t in range(5):
            b = AP + 4 * t
            a(f"v_mfma_f32_32x32x16_bf16 v[{ACC+16*t}:{ACC+16*t+15}], v[{b}:{b+3}], v[{BP}:{BP+3}], v[{ACC+16*t}:{ACC+16*t+15}]")

    def arrive(self):
        a = self.a
        lab = a.uniq("L_arr")
        a(f"s_cmp_eq_u32 s{sWAVE}, 0")
        a(f"s_cbranch_scc0 {lab}")
        a("v_mov_b32 v2, 1")
        self.lane0_off(3)
        a(f"buffer_atomic_add v2, v3, {srd(sWS)}, s{sT2} offen")
        a.label(lab)

    def poll2(self, offA, offB, target):
        a = self.a
        lab = a.uniq("L_poll"); done = a.uniq("L_polld")
        a(f"s_mov_b32 s{sT4}, 0")
        a("v_mov_b32 v3, 0")
        def issue(k):
            a(f"buffer_load_dword v{4+2*k}, v3, {srd(sWS)}, s{offA} offen sc1")
            a(f"buffer_load_dword v{5+2*k}, v3, {srd(sWS)}, s{offB} offen sc1")
        issue(0); a("s_sleep 3"); issue(1); a("s_sleep 3"); issue(2)
        a.label(lab)
        for k in range(3):
            a("s_waitcnt vmcnt(4)")
            a(f"v_min_u32 v2, v{4+2*k}, v{5+2*k}")
            a("s_nop 0")
            a(f"v_readfirstlane_b32 s{sT5}, v2")
            a("s_nop 3")
            a(f"s_cmp_ge_u32 s{sT5}, {target}")
            a(f"s_cbranch_scc1 {done}")
            issue(k)
        a(f"s_add_u32 s{sT4}, s{sT4}, 1")
        a(f"s_cmp_le_u32 s{sT4}, 100000")
        a(f"s_cbranch_scc1 {lab}")
        a.label(done)
        a("s_waitcnt vmcnt(0)")

    def epi_ffn(self):
        a = self.a
        a("s_barrier")
        self.ts(11)
        pf = self.a.uniq("L_pf")
        a(f"v_mul_f32 v25, {f2u(-LOG2E):#x}, v{vRSTD}")
        a(f"v_lshlrev_b32 v26, 4, v{vLANE}")
        self.p2_pref_begin()
        a(f"s_lshl_b32 s{sT2}, s{sRB}, 3")
        a(f"s_add_u32 s{sT2}, s{sT2}, s{sWAVE}")
        a(f"s_mul_i32 s{sT2}, s{sT2}, 136")
        a(f"s_add_u32 s{sT2}, s{sT2}, s{sT0F}")
        a(f"s_lshl_b32 s{sT2}, s{sT2}, 10")
        a(f"s_cmp_eq_u32 s{sP2OK}, 0")
        a(f"s_cselect_b32 s{sA}, s{sOOB}, s{sA}")
        npf = 0
        for t in range(5):
            A0 = ACC + 16 * t
            T = 64 + 12 * (t & 1)
            blocks = [
                [f"v_mul_f32 v{T+r}, v{A0+r}, v25" for r in range(8)],
                [f"v_exp_f32 v{T+r}, v{T+r}" for r in range(8)],
                [f"v_mul_f32 v{A0+r}, v{A0+r}, v{A0+8+r}" for r in range(8)],
                [f"v_fma_f32 v{T+r}, v{T+r}, v23, v23" for r in range(8)],
                [f"v_rcp_f32 v{T+r}, v{T+r}" for r in range(8)],
                [f"v_mul_f32 v{A0+r}, v{A0+r}, v{T+r}" for r in range(8)],
                [f"v_cvt_pk_bf16_f32 v{T+8+d}, v{A0+2*d}, v{A0+2*d+1}" for d in range(4)],
            ]
            for bi, blk in enumerate(blocks):
                for op in blk: a(op)
                if bi in (1, 4) and npf < self.o.get("npfe", 10):
                    self.p2_pref(npf); npf += 1
            if t == 4:
                a(f"s_cmp_ge_u32 s{sJOB}, 16")
                a("s_cbranch_scc1 L_ffn_nost")
                a(f"s_add_u32 s{sT2}, s{sT2}, 4096")
                a(f"buffer_store_dwordx4 v[{T+8}:{T+11}], v26, {srd(sWS)}, s{sT2} offen sc1")
            else:
                a(f"buffer_store_dwordx4 v[{T+8}:{T+11}], v26, {srd(sWS)}, s{sT2} offen offset:{t*1024} sc1")
        a.label("L_ffn_nost")
        self.ts(12 if not self.o.get("prots") else 99)
        a("s_waitcnt vmcnt(0)")
        a("s_barrier")
        a(f"s_lshl_b32 s{sT2}, s{sRB}, 8")
        a(f"s_add_u32 s{sT2}, s{sT2}, {CNT_OFF}")
        self.arrive()
        self.ts(3)
        for i in range(npf, 20): self.p2_pref(i)

    def softmax10(self, D, E, PK, c1, T):
        a = self.a
        mx, mn, t0, t1, sp, sn = T, T+1, T+2, T+3, T+4, T+5
        a(f"v_max3_f32 v{mx}, v{D}, v{D+1}, v{D+2}")
        a(f"v_min3_f32 v{mn}, v{D}, v{D+1}, v{D+2}")
        for i in (3, 5, 7):
            a(f"v_max3_f32 v{mx}, v{mx}, v{D+i}, v{D+i+1}")
            a(f"v_min3_f32 v{mn}, v{mn}, v{D+i}, v{D+i+1}")
        a(f"v_max_f32 v{mx}, v{mx}, v{D+9}")
        a(f"v_min_f32 v{mn}, v{mn}, v{D+9}")
        a(f"v_mov_b32 v{t0}, v{mx}")
        a(f"v_mov_b32 v{t1}, v{mn}")
        a(f"v_permlane32_swap_b32 v{mx}, v{t0}")
        a(f"v_permlane32_swap_b32 v{mn}, v{t1}")
        a(f"v_max_f32 v{mx}, v{mx}, v{t0}")
        a(f"v_min_f32 v{mn}, v{mn}, v{t1}")
        a(f"v_mul_f32 v{mx}, v{mx}, v{c1}")
        a(f"v_mul_f32 v{mn}, v{mn}, v{c1}")
        for i in range(10):
            a(f"v_fma_f32 v{E+i}, v{D+i}, v{c1}, -v{mx}")
            a(f"v_fma_f32 v{E+10+i}, -v{D+i}, v{c1}, v{mn}")
        for i in range(20): a(f"v_exp_f32 v{E+i}, v{E+i}")
        a(f"v_add_f32 v{sp}, v{E}, v{E+1}")
        a(f"v_add_f32 v{sn}, v{E+10}, v{E+11}")
        for i in range(2, 10):
            a(f"v_add_f32 v{sp}, v{sp}, v{E+i}")
            a(f"v_add_f32 v{sn}, v{sn}, v{E+10+i}")
        a(f"v_mov_b32 v{t0}, v{sp}")
        a(f"v_mov_b32 v{t1}, v{sn}")
        a(f"v_permlane32_swap_b32 v{sp}, v{t0}")
        a(f"v_permlane32_swap_b32 v{sn}, v{t1}")
        a(f"v_add_f32 v{sp}, v{sp}, v{t0}")
        a(f"v_add_f32 v{sn}, v{sn}, v{t1}")
        a(f"v_rcp_f32 v{sp}, v{sp}")
        a(f"v_rcp_f32 v{sn}, v{sn}")
        for i in range(10):
            a(f"v_mul_f32 v{E+i}, v{E+i}, v{sp}")
            a(f"v_mul_f32 v{E+10+i}, v{E+10+i}, v{sn}")
        for i in range(10):
            a(f"v_cvt_pk_bf16_f32 v{PK+i}, v{E+2*i}, v{E+2*i+1}")

    def cvtP(self, P, half):
        a = self.a
        for t in range(5):
            for i in range(2):
                G_ = 2 * t + i
                r = ACC + 16 * t + 8 * half + 4 * i
                a(f"v_cvt_pk_bf16_f32 v{P+2*G_}, v{r}, v{r+1}")
                a(f"v_cvt_pk_bf16_f32 v{P+2*G_+1}, v{r+2}, v{r+3}")
        a(f"v_mov_b32 v{P+20}, 0"); a(f"v_mov_b32 v{P+21}, 0")

    def rd_af(self, idx0, AF):
        for s_ in range(2):
            self.a(f"ds_read_b128 v[{AF+4*s_}:{AF+4*s_+3}], v{self.afbase} offset:{(idx0+s_)*1024}")
    def feat_mfma(self, D, P, p, AF):
        a = self.a
        G0 = [0, 2, 5, 7][p]
        a(f"v_mfma_f32_32x32x16_bf16 v[{D}:{D+15}], v[{AF}:{AF+3}], v[{P+2*G0}:{P+2*G0+3}], 0")
        a(f"v_mfma_f32_32x32x16_bf16 v[{D}:{D+15}], v[{AF+4}:{AF+7}], v[{P+2*G0+4}:{P+2*G0+7}], v[{D}:{D+15}]")

    def epi_kv(self):
        a = self.a
        self.afbase = vWPH
        P = 64
        D = [104, 120]
        E = 136
        PK = 88
        T = 156
        AFa = [40, 48, 8, 16]
        a(f"v_mul_f32 v25, {f2u(LOG2E):#x}, v{vRSTD}")
        self.rd_af(0, 40); self.rd_af(2, 48)
        self.cvtP(P, 0)
        a("s_waitcnt lgkmcnt(0)")
        self.feat_mfma(D[0], P, 0, 40)
        self.feat_mfma(D[1], P, 1, 48)
        self.rd_af(4, 40); self.rd_af(6, 48)
        a("s_barrier")
        self.ts(11)
        for t in range(5):
            for i in range(2):
                G_ = 2 * t + i
                r = ACC + 16 * t + 8 + 4 * i
                for e in range(4): a(f"v_mul_f32 v{r+e}, v{r+e}, v{vRSTD}")
                a(f"v_cvt_pk_bf16_f32 v162, v{r}, v{r+1}")
                a(f"v_cvt_pk_bf16_f32 v163, v{r+2}, v{r+3}")
                a(f"ds_write_b64 v{vVW}, v[162:163] offset:{16*G_}")
        for p in range(4):
            self.softmax10(D[p & 1], E, PK, 25, T)
            if p < 2:
                a("s_waitcnt lgkmcnt(0)")
                self.feat_mfma(D[p & 1], P, p + 2, 40 + 8 * p)
            for i in range(5):
                a(f"ds_write_b64 v{vPHW}, v[{PK+2*i}:{PK+2*i+1}] offset:{p*80 + i*8}")
        a("s_waitcnt lgkmcnt(0)")
        a("s_barrier")
        self.ts(3)
        KD = 104
        def rd(s_, buf):
            r = 64 + 8 * buf
            a(f"ds_read_b64_tr_b16 v[{r}:{r+1}], v{vKA}")
            a(f"v_add_u32 v{vKA}, v{vKA}, v{vKS}")
            a(f"ds_read_b64_tr_b16 v[{r+2}:{r+3}], v{vKA}")
            a(f"v_lshl_add_u32 v{vKA}, v{vKS}, 1, v{vKA}")
            a(f"v_add_u32 v{vKA}, v{vKA}, v{vKS}")
            bb, so = (vKB0, s_) if s_ < 8 else (vKB1, s_ - 8)
            a(f"ds_read_b64_tr_b16 v[{r+4}:{r+5}], v{bb} offset:{so*16*PHI_ROW}")
            a(f"ds_read_b64_tr_b16 v[{r+6}:{r+7}], v{bb} offset:{so*16*PHI_ROW + 4*PHI_ROW}")
        rd(0, 0); rd(1, 1); rd(2, 2)
        for s_ in range(16):
            buf = s_ % 3
            r = 64 + 8 * buf
            n = 4 * min(2, 15 - s_)
            a(f"s_waitcnt lgkmcnt({n})")
            c = "0" if s_ == 0 else f"v[{KD}:{KD+15}]"
            a(f"v_mfma_f32_32x32x16_bf16 v[{KD}:{KD+15}], v[{r}:{r+3}], v[{r+4}:{r+7}], {c}")
            if s_ + 3 < 16: rd(s_ + 3, buf)
        for r in range(12):
            off = (8 * (r >> 2) + (r & 3)) * 160
            v = vAT0 if r <= 8 else vAT1
            a(f"buffer_atomic_add_f32 v{KD+r}, v{v}, {srd(sWS)}, s{sXSTp} offen offset:{off}")
        a("s_waitcnt vmcnt(0)")
        a("s_barrier")
        a(f"s_lshl_b32 s{sT2}, s{sJOB}, 8")
        a(f"s_add_u32 s{sT2}, s{sT2}, {CNT_OFF + 16*256}")
        self.arrive()
        self.ts(4)

    def epi_q(self):
        a = self.a
        self.afbase = 30
        P0, P1 = 60, 82
        D = [104, 120]
        E = 136
        T = 32
        PH = 160
        a(f"v_mul_f32 v25, {f2u(LOG2E):#x}, v{vRSTD}")
        a(f"v_mov_b32 v38, v{vQG}"); a(f"v_mov_b32 v39, v{vL16g}"); a(f"v_mov_b32 v30, v{vWPH}")
        self.rd_af(0, 40); self.rd_af(2, 48)
        self.cvtP(P0, 0)
        self.cvtP(P1, 1)
        a("s_waitcnt lgkmcnt(0)")
        self.feat_mfma(D[0], P0, 0, 40)
        self.feat_mfma(D[1], P0, 1, 48)
        for h in range(8):
            hn = h + 2
            if hn < 8: self.rd_af((hn >> 2) * 8 + 2 * (hn & 3), 40 + 8 * (hn & 1))
            self.softmax10(D[h & 1], E, PH + 12 * h, 25, T)
            a(f"v_mov_b32 v{PH+12*h+10}, 0"); a(f"v_mov_b32 v{PH+12*h+11}, 0")
            if hn < 8:
                a("s_waitcnt lgkmcnt(0)")
                self.feat_mfma(D[h & 1], P0 if hn < 4 else P1, hn & 3, 40 + 8 * (hn & 1))
        self.ts(3)
        a(f"s_cmp_eq_u32 s{sWAVE}, 0")
        a("s_cbranch_scc0 L_q_nopoll")
        a(f"s_lshl_b32 s{sT2}, s{sJOB}, 9")
        a(f"s_add_u32 s{sT2}, s{sT2}, {CNT_OFF + 16*256}")
        a(f"s_add_u32 s{sT3}, s{sT2}, 256")
        self.poll2(sT2, sT3, 8)
        a.label("L_q_nopoll")
        a("s_barrier")
        self.ts(4)
        a(f"s_lshl_b32 s{sT4}, s{sJOB}, 3")
        a(f"s_add_u32 s{sT4}, s{sT4}, s{sWAVE}")
        a(f"s_lshl_b32 s{sT4}, s{sT4}, 12")
        a(f"s_add_u32 s{sT4}, s{sT4}, {KV_OFF}")
        for s_ in range(3):
            a(f"buffer_load_dwordx4 v[{104+8*s_}:{107+8*s_}], v38, {srd(sWS)}, s{sT4} offen offset:{32*s_} sc1")
            a(f"buffer_load_dwordx4 v[{108+8*s_}:{111+8*s_}], v38, {srd(sWS)}, s{sT4} offen offset:{32*s_+16} sc1")
        a(f"s_mul_i32 s{sT5}, s{sWAVE}, 3072")
        a(f"v_add_u32 v5, s{sT5}, v39")
        for s_ in range(3):
            a(f"s_waitcnt vmcnt({4-2*s_})")
            for d in range(4):
                a(f"v_cvt_pk_bf16_f32 v{136+4*s_+d}, v{104+8*s_+2*d}, v{105+8*s_+2*d}")
            a(f"ds_write_b128 v5, v[{136+4*s_}:{139+4*s_}] offset:{L_KVA + s_*1024}")
        a("s_waitcnt lgkmcnt(0)")
        a("s_barrier")
        OF = 60
        def rdA(h):
            b = 104 + 12 * (h & 1)
            for s_ in range(3): a(f"ds_read_b128 v[{b+4*s_}:{b+4*s_+3}], v39 offset:{L_KVA + (h*3+s_)*1024}")
        OD = [128, 144]
        a(f"s_lshl_b32 s{sT2}, s{sRB}, 3")
        a(f"s_add_u32 s{sT2}, s{sT2}, s{sWAVE}")
        a(f"s_mul_i32 s{sT2}, s{sT2}, 136")
        a(f"s_mul_i32 s{sT3}, s{sJOB}, 10")
        a(f"s_add_u32 s{sT2}, s{sT2}, s{sT3}")
        a(f"s_add_u32 s{sT2}, s{sT2}, 96")
        a(f"s_lshl_b32 s{sT2}, s{sT2}, 10")
        rdA(0)
        stored = 0
        def stores(upto):
            nonlocal stored
            while stored < upto:
                f = stored
                if f and f % 4 == 0: a(f"s_add_u32 s{sT2}, s{sT2}, 4096")
                a(f"buffer_store_dwordx4 v[{OF+4*f}:{OF+4*f+3}], v39, {srd(sWS)}, s{sT2} offen offset:{(f&3)*1024} sc1")
                stored += 1
        for h in range(8):
            if h < 7: rdA(h + 1)
            b = 104 + 12 * (h & 1)
            a(f"s_waitcnt lgkmcnt({3 if h < 7 else 0})")
            d = OD[h & 1]
            for s_ in range(3):
                c = "0" if s_ == 0 else f"v[{d}:{d+15}]"
                a(f"v_mfma_f32_32x32x16_bf16 v[{d}:{d+15}], v[{b+4*s_}:{b+4*s_+3}], v[{PH+12*h+4*s_}:{PH+12*h+4*s_+3}], {c}")
            if h >= 1:
                self.o_finish(OD[(h - 1) & 1], OF + 5 * (h - 1))
                stores((5 * h) // 4)
        self.o_finish(OD[7 & 1], OF + 35)
        stores(10)
        a("s_waitcnt vmcnt(0)")
        a("s_barrier")
        a(f"s_lshl_b32 s{sT2}, s{sRB}, 8")
        a(f"s_add_u32 s{sT2}, s{sT2}, {CNT_OFF + 8*256}")
        self.arrive()
        self.ts(5)

    def o_finish(self, d, dst):
        a = self.a
        a(f"v_add_f32 v37, {f2u(1e-6):#x}, v{d+10}")
        a("v_rcp_f32 v37, v37")
        for i in range(10): a(f"v_mul_f32 v{d+i}, v{d+i}, v37")
        for i in range(5): a(f"v_cvt_pk_bf16_f32 v{dst+i}, v{d+2*i}, v{d+2*i+1}")

    def p2_main(self):
        a = self.a
        D = self.o.get("depth", 4)
        NTT = 4
        a(f"s_cmp_eq_u32 s{sP2OK}, 0")
        a("s_cbranch_scc1 L_end")
        self.ts(6)
        a(f"s_lshr_b32 s{sC}, s{sRB2}, 1")
        a(f"s_mov_b32 s{sD}, s{sC}")
        a(f"s_lshl_b32 s{sTTG}, s{sRB2}, 2")
        vL16, vRES, vA0, vA1 = 12, 13, 10, 11
        XR = 24
        a(f"v_lshlrev_b32 v{vL16}, 4, v{vLANE}")
        self.build_srd(sW, PX, 2621440)
        a(f"s_lshr_b32 s{sTT}, s{sWAVE}, 1")
        a(f"s_and_b32 s{sKH}, s{sWAVE}, 1")
        a(f"s_add_u32 s{sT5}, s{sTTG}, s{sTT}")
        a(f"s_mul_i32 s{sT5}, s{sT5}, {32*1280}")
        a(f"s_lshl_b32 s{sTMP}, s{sCB}, 7")
        a(f"s_add_u32 s{sT5}, s{sT5}, s{sTMP}")
        a(f"s_lshl_b32 s{sTMP}, s{sKH}, 6")
        a(f"s_add_u32 s{sWCH}, s{sT5}, s{sTMP}")
        a(f"v_and_b32 v2, 31, v{vLANE}")
        a("v_mul_u32_u24 v2, 1280, v2")
        a(f"v_lshrrev_b32 v3, 5, v{vLANE}")
        a(f"v_lshl_add_u32 v{vRES}, v3, 3, v2")
        for q in range(4):
            a(f"buffer_load_dwordx2 v[{XR+2*q}:{XR+2*q+1}], v{vRES}, {srd(sW)}, s{sWCH} offen offset:{q*16}")
        a(f"s_cmp_ge_u32 s{sWAVE}, 4")
        a("s_cbranch_scc1 L_p2_helper")
        HB, WB, PA = 64, 40, 128
        self.build_srd(sX, PWS, HO_SIZE)
        sH = [sXOFF, sXDST, sWDST, sWSTp]
        sO = [sWBEG, sXBEG, sWEND, sWSTm]
        for tt in range(NTT):
            a(f"s_add_u32 s{sT2}, s{sTTG}, {tt}")
            a(f"s_mul_i32 s{sT2}, s{sT2}, 136")
            a(f"s_mul_i32 s{sT3}, s{sWAVE}, 24")
            a(f"s_add_u32 s{sT3}, s{sT3}, s{sT2}")
            a(f"s_lshl_b32 s{sH[tt]}, s{sT3}, 10")
            a(f"s_mul_i32 s{sT3}, s{sWAVE}, 10")
            a(f"s_add_u32 s{sT3}, s{sT3}, s{sT2}")
            a(f"s_add_u32 s{sT3}, s{sT3}, 96")
            a(f"s_lshl_b32 s{sO[tt]}, s{sT3}, 10")
        a(f"s_lshl_b32 s{sTMP}, s{sCB}, 7")
        a(f"s_mul_i32 s{sWOFF}, s{sWAVE}, {24*16*1280}")
        a(f"s_add_u32 s{sWOFF}, s{sWOFF}, s{sTMP}")
        a(f"s_mul_i32 s{sXEND}, s{sWAVE}, {10*16*1280}")
        a(f"s_add_u32 s{sXEND}, s{sXEND}, s{sTMP}")
        a(f"s_mul_i32 s{sRST}, s{sWAVE}, 40960")
        a(f"v_lshrrev_b32 v2, 5, v{vLANE}")
        a(f"v_bfe_u32 v3, v{vLANE}, 2, 2")
        a("v_lshl_add_u32 v2, v2, 3, v3")
        a("v_lshlrev_b32 v2, 7, v2")
        a(f"v_bfe_u32 v4, v{vLANE}, 4, 1")
        a("v_lshlrev_b32 v4, 1, v4")
        a(f"v_bfe_u32 v5, v{vLANE}, 1, 1")
        a("v_add_u32 v4, v4, v5")
        a("v_bfe_u32 v5, v3, 1, 1")
        a("v_lshlrev_b32 v5, 2, v5")
        a("v_xor_b32 v4, v4, v5")
        a("v_lshl_add_u32 v2, v4, 4, v2")
        a(f"v_and_b32 v5, 1, v{vLANE}")
        a("v_lshl_add_u32 v2, v5, 3, v2")
        a(f"v_add_u32 v{vA0}, s{sRST}, v2")
        a(f"v_xor_b32 v{vA1}, 64, v{vA0}")
        for i in range(4): a(f"v_mov_b32 v{32+i}, v{vP2+i}")
        a("s_waitcnt vmcnt(0)")
        a("s_barrier")
        self.ts(7)
        vm = []
        def V(t): vm.append(t)
        def wait_n(tags):
            idx = [i for i, t in enumerate(vm) if t in tags]
            return len(vm) - 1 - max(idx) if idx else 63
        hn = [0]
        def hload(n):
            assert n == hn[0]; hn[0] += 1
            for tt in range(NTT):
                if n < 24: base, k = sH[tt], n
                else: base, k = sO[tt], n - 24
                if k and k % 4 == 0: a(f"s_add_u32 s{base}, s{base}, 4096")
                b = HB + 4 * NTT * (n % D) + 4 * tt
                a(f"buffer_load_dwordx4 v[{b}:{b+3}], v{vL16}, {srd(sX)}, s{base} offen offset:{(k&3)*1024}" + ("" if self.o.get("p2plain") else " sc1"))
                V(f"H{n}")
        def refill(m):
            slot = m - 20
            for hh in range(2):
                a(f"s_add_u32 m0, s{sRST}, {slot * 2048 + hh * 1024}")
                if m < 24:
                    a(f"s_add_u32 s{sT5}, s{sWOFF}, {m * 16 * 1280}")
                    a(f"buffer_load_dwordx4 v{32+hh}, {srd(sT0)}, s{sT5} offen lds")
                else:
                    a(f"s_add_u32 s{sT5}, s{sXEND}, {(m - 24) * 16 * 1280}")
                    a(f"buffer_load_dwordx4 v{34+hh}, {srd(sT1)}, s{sT5} offen lds")
                V(f"W{m}")
        def wread(n):
            if n >= 34: return
            slot = n % 20
            if n >= 20: a(f"s_waitcnt vmcnt({min(wait_n([f'W{n}']), 63)})")
            for nt in range(2):
                b = WB + 8 * (n & 1) + 4 * nt
                va = vA0 if nt == 0 else vA1
                a(f"ds_read_b64_tr_b16 v[{b}:{b+1}], v{va} offset:{slot*2048}")
                a(f"ds_read_b64_tr_b16 v[{b+2}:{b+3}], v{va} offset:{slot*2048 + 512}")
        for n in range(D): hload(n)
        wread(0); wread(1)
        OST = 24
        for n in range(34):
            if n == OST:
                a("s_barrier")
                while hn[0] < min(34, n + D): hload(hn[0])
            a(f"s_waitcnt vmcnt({min(wait_n([f'H{n}']), 63)}) lgkmcnt({4 if n < 33 else 0})")
            hb = HB + 4 * NTT * (n % D)
            for nt in range(2):
                b = WB + 8 * (n & 1) + 4 * nt
                for tt in range(NTT):
                    ac = PA + 16 * (tt * 2 + nt)
                    cin = "0" if n == 0 else f"v[{ac}:{ac+15}]"
                    a(f"v_mfma_f32_32x32x16_bf16 v[{ac}:{ac+15}], v[{b}:{b+3}], v[{hb+4*tt}:{hb+4*tt+3}], {cin}")
            m = n + D
            if m < 34 and m == hn[0] and (m < 24 or n >= OST): hload(m)
            if n + 20 < 34: refill(n + 20)
            wread(n + 2)
        self.ts(8)
        a(f"v_add_u32 v2, s{sRST}, v{vL16}")
        for tau in range(2 * NTT):
            for q in range(4):
                a(f"ds_write_b128 v2, v[{PA+16*tau+4*q}:{PA+16*tau+4*q+3}] offset:{tau*4096 + q*1024}")
        a("s_waitcnt lgkmcnt(0)")
        a("s_branch L_p2_fin")
        a.label("L_p2_helper")
        a(f"s_cmp_eq_u32 s{sWAVE}, 4")
        a("s_cbranch_scc0 L_p2_h1")
        a(f"s_lshl_b32 s{sT2}, s{sC}, 8")
        a(f"s_add_u32 s{sT2}, s{sT2}, {CNT_OFF}")
        a(f"s_lshl_b32 s{sT3}, s{sD}, 8")
        a(f"s_add_u32 s{sT3}, s{sT3}, {CNT_OFF}")
        self.poll2(sT2, sT3, 20)
        a.label("L_p2_h1")
        a("s_waitcnt vmcnt(0)")
        a("s_barrier")
        if self.o.get("noopoll"): a("s_branch L_p2_h2")
        a(f"s_cmp_eq_u32 s{sWAVE}, 4")
        a("s_cbranch_scc0 L_p2_h2")
        a(f"s_lshl_b32 s{sT2}, s{sC}, 8")
        a(f"s_add_u32 s{sT2}, s{sT2}, {CNT_OFF + 8*256}")
        a(f"s_lshl_b32 s{sT3}, s{sD}, 8")
        a(f"s_add_u32 s{sT3}, s{sT3}, {CNT_OFF + 8*256}")
        self.poll2(sT2, sT3, 4)
        a.label("L_p2_h2")
        a("s_barrier")
        a.label("L_p2_fin")
        a("s_barrier")
        PA2 = 128
        a(f"s_lshl_b32 s{sT2}, s{sWAVE}, 12")
        a(f"v_add_u32 v2, s{sT2}, v{vL16}")
        for kq in range(4):
            for q in range(4):
                off = kq * 40960 + q * 1024
                if off < 65536: a(f"ds_read_b128 v[{PA2+16*kq+4*q}:{PA2+16*kq+4*q+3}], v2 offset:{off}")
                else:
                    if kq == 2 and q == 0: a(f"v_add_u32 v3, {2*40960}, v2")
                    a(f"ds_read_b128 v[{PA2+16*kq+4*q}:{PA2+16*kq+4*q+3}], v3 offset:{off - 2*40960}")
        self.build_srd(sT0, POUT, 2621440)
        a(f"v_and_b32 v4, 31, v{vLANE}")
        a("v_mul_u32_u24 v4, 1280, v4")
        a(f"v_lshrrev_b32 v5, 5, v{vLANE}")
        a("v_lshl_add_u32 v4, v5, 4, v4")
        for q in range(4):
            for h2 in range(2):
                x = XR + 2 * q + h2
                a(f"v_lshlrev_b32 v{64+4*q+2*h2}, 16, v{x}")
                a(f"v_and_b32 v{64+4*q+2*h2+1}, 0xffff0000, v{x}")
        a("s_waitcnt lgkmcnt(8)")
        for i in range(16): a(f"v_add_f32 v{PA2+i}, v{PA2+i}, v{PA2+16+i}")
        for i in range(16): a(f"v_add_f32 v{PA2+i}, v{PA2+i}, v{64+i}")
        a("s_waitcnt lgkmcnt(0)")
        for i in range(16): a(f"v_add_f32 v{PA2+32+i}, v{PA2+32+i}, v{PA2+48+i}")
        for i in range(16): a(f"v_add_f32 v{PA2+i}, v{PA2+i}, v{PA2+32+i}")
        O = 84
        for q in range(4):
            a(f"v_cvt_pk_bf16_f32 v{O+2*q}, v{PA2+4*q}, v{PA2+4*q+1}")
            a(f"v_cvt_pk_bf16_f32 v{O+2*q+1}, v{PA2+4*q+2}, v{PA2+4*q+3}")
        for pr in range(2):
            a(f"v_permlane32_swap_b32 v{O+4*pr}, v{O+4*pr+2}")
            a(f"v_permlane32_swap_b32 v{O+4*pr+1}, v{O+4*pr+3}")
        for pr in range(2):
            a(f"buffer_store_dwordx4 v[{O+4*pr}:{O+4*pr+3}], v4, {srd(sT0)}, s{sWCH} offen offset:{pr*32} sc1")
        self.ts(9)
        a("s_branch L_end")

    def gen(self):
        a = self.a
        self.prologue()
        self.mainloop()
        self.ts(2)
        if self.o.get("cyc"):
            a("s_memtime s[26:27]")
            self.ts(15, src=26)
        if self.o.get("loopts"):
            a(f"s_lshl_b32 s{sT2}, s2, 3")
            a(f"s_add_u32 s{sT2}, s{sT2}, s{sWAVE}")
            a(f"s_lshl_b32 s{sT2}, s{sT2}, 8")
            a(f"s_add_u32 s{sT2}, s{sT2}, {DBG_OFF + 256*8*64}")
            a(f"v_lshlrev_b32 v2, 2, v{vLANE}")
            a(f"buffer_store_dword v125, v2, {srd(sWS)}, s{sT2} offen")
        self.mean_corr()
        a(f"s_cmp_eq_u32 s{sTYPE}, 2")
        a("s_cbranch_scc1 L_ffn")
        a(f"s_cmp_eq_u32 s{sTYPE}, 1")
        a("s_cbranch_scc1 L_q")
        self.epi_kv()
        a("s_branch L_end")
        a.label("L_q")
        self.epi_q()
        a("s_branch L_end")
        a.label("L_ffn")
        self.epi_ffn()
        a.label("L_p2")
        if self.o.get("nop2"):
            a("s_branch L_end")
        self.p2_main()
        lines = a.l + ["s_branch L_end"] + self.ool.l + ["L_end:", "s_endpgm"]
        lines, added = pad_hazards(lines)
        body = "\n".join(("    " + l if not l.endswith(":") else l) for l in lines)
        hdr = open("cdna_kernels/" + KNAME[:-7] + ".s.ref").read().split("; Override launch geometry")[0]
        txt = hdr + f"""; Fused single-launch kernel: LN + QKV/FFN GEMM + hedgehog linear attention + output GEMM (generated by my own script).
; @launch grid=(256,1,1) block=(512,1,1) lds={LDS_TOTAL}
.amdgcn_target "amdgcn-amd-amdhsa--gfx950"
.text
.globl {KNAME}
.p2align 8
.type {KNAME},@function
{KNAME}:
{body}
.section .rodata,"a"
.p2align 6
.amdhsa_kernel {KNAME}
  .amdhsa_next_free_vgpr 256
  .amdhsa_next_free_sgpr 102
  .amdhsa_accum_offset 256
  .amdhsa_group_segment_fixed_size 0
  .amdhsa_kernarg_size 88
  .amdhsa_user_sgpr_count 2
  .amdhsa_user_sgpr_kernarg_segment_ptr 1
  .amdhsa_system_sgpr_workgroup_id_x 1
.end_amdhsa_kernel
"""
        return txt, added

if __name__ == "__main__":
    import argparse
    ap = argparse.ArgumentParser()
    ap.add_argument("-o", default="k.s")
    for f in ("dev", "ts", "nop2", "p2plain", "noopoll", "nowarm", "p2ts", "loopts", "prots", "xw", "nocs", "notouch", "cyc", "nostag", "x_nodma", "x_notch", "x_lg8", "x_nospec", "cpf"): ap.add_argument("--" + f, action="store_true")
    ap.add_argument("--tsset", default=None)
    ap.add_argument("--depth", type=int, default=4)
    ap.add_argument("--npfe", type=int, default=10)
    ap.add_argument("--specmask", type=lambda x: int(x, 0), default=None)
    args = ap.parse_args()
    o = dict(dev=args.dev or args.ts, ts=args.ts, nop2=args.nop2, p2plain=args.p2plain, noopoll=args.noopoll, nowarm=args.nowarm, depth=args.depth, p2ts=args.p2ts, loopts=args.loopts, prots=args.prots, xw=args.xw, nocs=args.nocs, notouch=args.notouch, cyc=args.cyc, nostag=args.nostag, x_nodma=args.x_nodma, x_notch=args.x_notch, x_lg8=args.x_lg8, x_nospec=args.x_nospec, cpf=args.cpf, specmask=args.specmask, npfe=args.npfe)
    if args.tsset: o["tsset"] = set(int(x) for x in args.tsset.split(","))
    g = G(o)
    txt, added = g.gen()
    open(args.o, "w").write(txt)
    print("written", args.o, "lines", txt.count("\n"), "hazard pad states", added)
```
